```python
import torch

def _softmax(x, axis=-1):
    return torch.softmax(x, dim=axis)
def _gelu(x):
    return torch.nn.functional.gelu(x, approximate="tanh")
def _silu(x):
    return torch.nn.functional.silu(x)
def _sigmoid(x):
    return torch.sigmoid(x)
def _layernorm(x, axis=-1, eps=1e-5):
    m = x.mean(dim=axis, keepdim=True)
    v = x.var(dim=axis, keepdim=True, unbiased=False)
    return (x - m) / torch.sqrt(v + eps)
def _scatter_add(tgt, idx, src, axis=0):
    return tgt.clone().index_add_(axis, idx, src)
def _segment_sum(src, seg, n):
    out = torch.zeros((n,) + src.shape[1:], dtype=src.dtype)
    return out.index_add_(0, seg, src)
def _pad(x, pw):
    flat = tuple(v for pair in reversed(pw) for v in pair)
    return torch.nn.functional.pad(x, flat)

kernel_name = 'concat_heads__mha_block__linear_attn_block__prompt'

def setup_inputs():

    _w = (lambda a: (lambda t: t.to(torch.bfloat16) if t.is_floating_point() else t)(torch.as_tensor(a)))
    def _A_setup():
        B, S, D, H = 1, 2048, 576, 32
        return {
            "x": _w((lambda *s: torch.randn(*s, dtype=torch.bfloat16) * 0.2)(B, S, D)),
            "wqkv": _w((lambda *s: torch.randn(*s, dtype=torch.bfloat16) * 0.2)(D, 3 * D)),
            "wo": _w((lambda *s: torch.randn(*s, dtype=torch.bfloat16) * 0.05)(D, D)),
        }
    _A_in = _A_setup()

    def _B_setup():
        B, S, D = 1, 2048, 576
        return {
            "x": _w((lambda *s: torch.randn(*s, dtype=torch.bfloat16) * 0.05)(B, S, D)),
            "wqkv": _w((lambda *s: torch.randn(*s, dtype=torch.bfloat16) * 1.6)(D, 3 * D)),
            "wo": _w((lambda *s: torch.randn(*s, dtype=torch.bfloat16) * 0.05)(D, D)),
        }
    _B_in = _B_setup()

    return {
        "A_x": _A_in["x"],
        "A_wqkv": _A_in["wqkv"],
        "A_wo": _A_in["wo"],
        "B_x": _B_in["x"],
        "B_wqkv": _B_in["wqkv"],
        "B_wo": _B_in["wo"],
    }

def reference(A_x, A_wqkv, A_wo, B_x, B_wqkv, B_wo):
    def _A_ref(x, wqkv, wo):
        B, S, D = x.shape
        H = 32
        Dh = D // H
        qkv = (lambda x, *d: x.permute(*d))((x @ wqkv).reshape(B, S, 3, H, Dh), 2, 0, 3, 1, 4)
        q, k, v = qkv[0], qkv[1], qkv[2]
        scores = torch.einsum("bhqd,bhkd->bhqk", q, k) * (Dh ** -0.5)
        p = _softmax(scores, axis=-1)
        o = torch.einsum("bhqk,bhkd->bhqd", p, v)
        return (lambda x, *d: x.permute(*d))(o, 0, 2, 1, 3).reshape(B, S, D) @ wo

    def _B_ref(x, wqkv, wo):
        B, S, D = x.shape
        H = 32; Dh = D // H
        qkv = (lambda x, *d: x.permute(*d))((x @ wqkv).reshape(B, S, 3, H, Dh), 2, 0, 3, 1, 4)
        q, k, v = qkv[0], qkv[1], qkv[2]
        phi = lambda t: torch.where(t > 0, t + 1, torch.exp(t)) + 1e-6
        pq, pk = phi(q), phi(k)
        kv = torch.einsum("bhsd,bhse->bhde", pk, v)
        z = torch.einsum("bhsd->bhd", pk)
        num = torch.einsum("bhqd,bhde->bhqe", pq, kv)
        den = torch.einsum("bhqd,bhd->bhq", pq, z)[..., None] + 1e-6
        o = num / den
        return (lambda x, *d: x.permute(*d))(o, 0, 2, 1, 3).reshape(B, S, D) @ wo

    a = _A_ref(A_x, A_wqkv, A_wo)
    b = _B_ref(B_x, B_wqkv, B_wo)
    return torch.concatenate([a, b], axis=-1)
```

```python
class Asm:
    def __init__(self):
        self.lines = []
        self.lds_q = []
        self.vm_q = []
    def __call__(self, s):
        for l in s.strip("\n").split("\n"):
            self.lines.append("  " + l.strip() if not l.strip().endswith(":") else l.strip())
    def label(self, name): self.lines.append(name + ":")
    def comment(self, s): self.lines.append("  ; " + s)
    def ds(self, instr, tag=None):
        self(instr); self.lds_q.append(tag)
    def wait_ds(self, *tags):
        last = -1
        for i, t in enumerate(self.lds_q):
            if t in tags: last = i
        if last < 0: return
        n = len(self.lds_q) - 1 - last
        assert n <= 15, n
        self(f"s_waitcnt lgkmcnt({n})")
        self.lds_q = self.lds_q[last + 1:]
    def wait_ds_all(self):
        self("s_waitcnt lgkmcnt(0)"); self.lds_q = []
    def vm(self, instr, tag=None):
        self(instr); self.vm_q.append(tag)
    def wait_vm(self, *tags):
        last = -1
        for i, t in enumerate(self.vm_q):
            if t in tags: last = i
        if last < 0: return
        n = len(self.vm_q) - 1 - last
        assert n <= 63, n
        self(f"s_waitcnt vmcnt({n})")
        self.vm_q = self.vm_q[last + 1:]
    def wait_vm_all(self):
        self("s_waitcnt vmcnt(0)"); self.vm_q = []
    def text(self): return "\n".join(self.lines) + "\n"

def vr(a, n=1):
    return f"v{a}" if n == 1 else f"v[{a}:{a+n-1}]"
def sr(a, n=1):
    return f"s{a}" if n == 1 else f"s[{a}:{a+n-1}]"

def srd(a, dst, base, nbytes):
    a(f"s_mov_b32 s{dst}, s{base}")
    a(f"s_mov_b32 s{dst+1}, s{base+1}")
    a(f"s_mov_b32 s{dst+2}, {hex(nbytes)}")
    a(f"s_mov_b32 s{dst+3}, 0x20000")

def descriptor(name, vgpr, sgpr=96):
    acc = (vgpr + 3) // 4 * 4
    return f""".amdhsa_kernel {name}
  .amdhsa_next_free_vgpr {vgpr}
  .amdhsa_next_free_sgpr {sgpr}
  .amdhsa_accum_offset {acc}
  .amdhsa_group_segment_fixed_size 0
  .amdhsa_kernarg_size 72
  .amdhsa_user_sgpr_count 2
  .amdhsa_user_sgpr_kernarg_segment_ptr 1
  .amdhsa_system_sgpr_workgroup_id_x 1
.end_amdhsa_kernel
"""
```

```python
from asmlib import *
from layout import *

NAME = "qkv_kernel"
XSL = 8192; WSL = 14336; NSL = 7
XB = 0; WB = NSL * XSL
LDS_BYTES = WB + NSL * WSL
sX, sW, sWS = 12, 16, 20
sWV, sTB, sG, sBR = 24, 25, 26, 27
sXS, sWSO, sXL, sWL = 28, 29, 30, 31
sLSL, sRSL, sSTEP = 32, 33, 34
sHD = 35
sT0, sT1, sT2, sT3 = 36, 37, 38, 39
sC0 = 50
sC1 = 52
sEX = 54
vLANE = 0
vXOFF = 1
vWOFF = 2
vXRD = 6
vWRD = 8
vT = 10
vHM = 9
WF = 64
XF = 92
ACC = 128
PD = 5

def acc(T, rq=0, r=0): return ACC + 16 * T + 4 * rq + r
def greg(G): return acc(G >> 3, (G & 7) >> 1)

def dma_step(a, part):
    if part == 0:
        a(f"s_mov_b32 m0, s{sXL}")
        a(f"s_add_u32 s{sT0}, s{sXS}, {64*1152}")
        a.vm(f"buffer_load_dwordx4 v{vXOFF}, s[{sX}:{sX+3}], s{sXS} offen lds", "dma")
        a(f"s_add_u32 m0, s{sXL}, 4096")
        a(f"s_add_u32 s{sXS}, s{sXS}, 64")
        a.vm(f"buffer_load_dwordx4 v{vXOFF}, s[{sX}:{sX+3}], s{sT0} offen lds", "dma")
    elif part == 1:
        a(f"s_mov_b32 m0, s{sWL}")
        a("s_nop 0")
        a.vm(f"buffer_load_dwordx4 v{vWOFF}, s[{sW}:{sW+3}], s{sWSO} offen lds", "dma")
        a(f"s_add_u32 m0, s{sWL}, 4096")
        a("s_nop 0")
        a.vm(f"buffer_load_dwordx4 v{vWOFF+1}, s[{sW}:{sW+3}], s{sWSO} offen lds", "dma")
    else:
        a(f"s_add_u32 m0, s{sWL}, 8192")
        a("s_nop 0")
        a.vm(f"buffer_load_dwordx4 v{vWOFF+2}, s[{sW}:{sW+3}], s{sWSO} offen lds", "dma")
        a(f"s_add_u32 m0, s{sWL}, s{sHD}")
        a(f"s_mov_b32 exec_hi, 0")
        a.vm(f"buffer_load_dwordx4 v{vWOFF+3}, s[{sW}:{sW+3}], s{sWSO} offen lds", "dma")
        a(f"s_mov_b32 exec_hi, -1")
        a(f"s_add_u32 s{sWSO}, s{sWSO}, {32*3456}")
        a(f"s_add_u32 s{sLSL}, s{sLSL}, 1")
        a(f"s_cmp_eq_u32 s{sLSL}, {NSL}")
        a(f"s_cselect_b32 s{sT0}, s57, s56")
        a(f"s_cselect_b32 s{sT1}, s59, s58")
        a(f"s_cselect_b32 s{sLSL}, 0, s{sLSL}")
        a(f"s_add_u32 s{sXL}, s{sXL}, s{sT0}")
        a(f"s_add_u32 s{sWL}, s{sWL}, s{sT1}")

def read_w(a, i):
    ts, T = divmod(i, 7)
    b = WF + 4 * (i % 7)
    for u in range(2):
        off = ts * 16 * 448 + u * 4 * 448 + T * 64
        a.ds(f"ds_read_b64_tr_b16 v[{b+2*u}:{b+2*u+1}], v{vWRD} offset:{off}", f"W{i%7}")
def read_x(a, ts):
    b = XF + 4 * ts
    a.ds(f"ds_read_b128 v[{b}:{b+3}], v{vXRD+ts}", f"X{ts}")

def pack_part(a, Gb, tmp):
    C = [tmp, tmp + 4, tmp + 8, tmp + 12]
    P2, P4, P6 = tmp + 16, tmp + 18, tmp + 20
    X0, X1 = tmp + 22, tmp + 23
    dst = {0: C[0], 1: C[0] + 2, 3: C[1], 5: C[2], 7: C[3], 8: C[3] + 2, 2: P2, 4: P4, 6: P6}
    for pi in range(9):
        s = greg(Gb + 2 * pi)
        a(f"v_cvt_pk_bf16_f32 v{dst[pi]}, v{s}, v{s+1}")
        a(f"v_cvt_pk_bf16_f32 v{dst[pi]+1}, v{s+2}, v{s+3}")
    for k in range(2):
        a(f"v_bfi_b32 v{C[1]+2+k}, v{vHM}, v{P2+k}, v{P4+k}")
        a(f"v_bfi_b32 v{C[2]+2+k}, v{vHM}, v{P4+k}, v{P6+k}")
    a(f"v_bfi_b32 v{X0}, v{vHM}, v{P6}, v{P2}")
    a(f"v_bfi_b32 v{X1}, v{vHM}, v{P6+1}, v{P2+1}")
    return C, X0, X1

def store_q(a, base_ws, C, X0, X1):
    vm, vx = vT, vT + 1
    a(f"v_lshlrev_b32 v{vm}, 4, v{vLANE}")
    a(f"v_and_b32 v{vx}, 31, v{vLANE}")
    a(f"v_lshlrev_b32 v{vx}, 2, v{vx}")
    a(f"v_and_b32 v{vT+2}, {2*QHS}, v{vHM}")
    a(f"v_add_u32 v{vx}, v{vx}, v{vT+2}")
    a(f"s_lshl_b32 s{sT0}, s{sG}, 8")
    a(f"s_lshl_b32 s{sT1}, s{sTB}, 2")
    a(f"s_add_u32 s{sT0}, s{sT0}, s{sT1}")
    a(f"s_add_u32 s{sT0}, s{sT0}, s{sWV}")
    a(f"s_mul_i32 s{sT0}, s{sT0}, {QT}")
    a(f"s_add_u32 s{sT0}, s{sT0}, {base_ws}")
    for j in range(4):
        a.vm(f"buffer_store_dwordx4 v[{C[j]}:{C[j]+3}], v{vm}, s[{sWS}:{sWS+3}], s{sT0} offen")
        if j == 0: a.vm(f"buffer_store_dword v{X0}, v{vx}, s[{sWS}:{sWS+3}], s{sT0} offen offset:1024")
        if j == 1: a.vm(f"buffer_store_dword v{X1}, v{vx}, s[{sWS}:{sWS+3}], s{sT0} offen offset:1024")
        if j < 3: a(f"s_add_u32 s{sT0}, s{sT0}, {QHS}")

def phi(a, regs):
    tmp = [vT + 8, vT + 10, vT + 12, vT + 14]
    n = len(regs)
    for b in range(0, n, 4):
        grp = regs[b:b + 4]
        for k, r in enumerate(grp):
            a(f"v_pk_mul_f32 v[{tmp[k]}:{tmp[k]+1}], v[{r}:{r+1}], s[{sC0}:{sC0+1}]")
        for k, r in enumerate(grp):
            a(f"v_exp_f32_e64 v{tmp[k]}, v{tmp[k]} clamp")
            a(f"v_exp_f32_e64 v{tmp[k]+1}, v{tmp[k]+1} clamp")
        for k, r in enumerate(grp):
            a(f"v_max_f32 v{r}, 0, v{r}")
            a(f"v_max_f32 v{r+1}, 0, v{r+1}")
        for k, r in enumerate(grp):
            a(f"v_pk_add_f32 v[{r}:{r+1}], v[{r}:{r+1}], v[{tmp[k]}:{tmp[k]+1}]")
        for k, r in enumerate(grp):
            a(f"v_pk_add_f32 v[{r}:{r+1}], v[{r}:{r+1}], s[{sC1}:{sC1+1}]")

def gen():
    a = Asm()
    a(f".globl {NAME}\n.p2align 8\n.type {NAME},@function")
    a.label(NAME)
    a("s_cmp_ge_u32 s2, 256")
    a("s_cbranch_scc1 K1_END")
    a("s_load_dwordx4 s[40:43], s[0:1], 0")
    a("s_load_dwordx4 s[44:47], s[0:1], 24")
    a("s_load_dwordx2 s[8:9], s[0:1], 64")
    a(f"""s_and_b32 s{sT0}, s2, 7
    s_lshr_b32 s{sT1}, s2, 3
    s_lshr_b32 s{sBR}, s{sT0}, 2
    s_and_b32 s{sT2}, s{sT0}, 1
    s_lshl_b32 s{sT2}, s{sT2}, 3
    s_and_b32 s{sT3}, s{sT1}, 7
    s_add_u32 s{sTB}, s{sT2}, s{sT3}
    s_bfe_u32 s{sT2}, s{sT0}, 0x10001
    s_lshl_b32 s{sT2}, s{sT2}, 2
    s_lshr_b32 s{sT3}, s{sT1}, 3
    s_add_u32 s{sG}, s{sT2}, s{sT3}
    v_lshrrev_b32 v1, 6, v0
    v_and_b32 v0, 63, v0
    v_readfirstlane_b32 s{sWV}, v1""")
    t = vT
    a(f"""v_lshrrev_b32 v{t}, 2, v0
    v_and_b32 v{t+1}, 3, v0
    v_bfe_u32 v{t+2}, v0, 4, 2
    v_xor_b32 v{t+1}, v{t+1}, v{t+2}
    v_lshlrev_b32 v{t+1}, 4, v{t+1}
    v_mul_u32_u24 v{t}, 1152, v{t}
    v_add_u32 v{vXOFF}, v{t}, v{t+1}""")
    for m in range(4):
        if m < 3:
            a(f"s_lshl_b32 s{sT0}, s{sWV}, 6")
            if m: a(f"s_add_u32 s{sT0}, s{sT0}, {256*m}")
        else:
            a(f"s_lshl_b32 s{sT0}, s{sWV}, 5")
            a(f"s_add_u32 s{sT0}, s{sT0}, 768")
        a(f"""v_add_u32 v{t}, s{sT0}, v0
        v_mul_u32_u24 v{t+1}, 2341, v{t}
        v_lshrrev_b32 v{t+1}, 16, v{t+1}
        v_mul_u32_u24 v{t+2}, 28, v{t+1}
        v_sub_u32 v{t+2}, v{t}, v{t+2}
        v_min_u32 v{t+2}, 26, v{t+2}
        v_mul_u32_u24 v{t+3}, 57, v{t+2}
        v_lshrrev_b32 v{t+3}, 9, v{t+3}
        v_mul_u32_u24 v{t+1}, 3456, v{t+1}
        v_mul_u32_u24 v{t+3}, 1008, v{t+3}
        v_lshlrev_b32 v{t+2}, 4, v{t+2}
        v_add3_u32 v{vWOFF+m}, v{t+1}, v{t+2}, v{t+3}""")
    a("s_waitcnt lgkmcnt(0)")
    a(f"""s_cmp_eq_u32 s{sBR}, 0
    s_cselect_b32 s4, s40, s44
    s_cselect_b32 s5, s41, s45
    s_cselect_b32 s6, s42, s46
    s_cselect_b32 s7, s43, s47""")
    srd(a, sX, 4, X_BYTES); srd(a, sW, 6, W_BYTES); srd(a, sWS, 8, WS_BYTES)
    a(f"""s_mul_i32 s{sXS}, s{sTB}, {128*1152}
    s_mul_i32 s{sT0}, s{sWV}, {16*1152}
    s_add_u32 s{sXS}, s{sXS}, s{sT0}
    s_mul_i32 s{sWSO}, s{sG}, 144
    s_lshl_b32 s{sXL}, s{sWV}, 10
    s_add_u32 s{sWL}, s{sXL}, {WB}
    s_lshl_b32 s{sT0}, s{sWV}, 9
    s_sub_u32 s{sHD}, 12288, s{sT0}
    s_mov_b32 s{sLSL}, 0
    s_mov_b32 s56, {XSL}
    s_mov_b32 s57, {-(NSL-1)*XSL & 0xffffffff}
    s_mov_b32 s58, {WSL}
    s_mov_b32 s59, {-(NSL-1)*WSL & 0xffffffff}""")
    for s in range(6):
        for p in range(3): dma_step(a, p)
    a(f"""v_and_b32 v{t}, 31, v0
    v_lshrrev_b32 v{t+1}, 5, v0
    v_bfe_u32 v{t+2}, v0, 2, 2
    v_xor_b32 v{t+2}, v{t+1}, v{t+2}
    v_lshlrev_b32 v{t+2}, 4, v{t+2}
    v_lshlrev_b32 v{t}, 6, v{t}
    s_lshl_b32 s{sT0}, s{sWV}, 11
    v_add3_u32 v{vXRD}, v{t}, v{t+2}, s{sT0}
    v_xor_b32 v{vXRD+1}, 32, v{vXRD}
    v_lshlrev_b32 v{t+1}, 3, v{t+1}
    v_bfe_u32 v{t+2}, v0, 2, 2
    v_add_u32 v{t+1}, v{t+1}, v{t+2}
    v_mul_u32_u24 v{t+1}, 448, v{t+1}
    v_bfe_u32 v{t+2}, v0, 4, 1
    v_lshlrev_b32 v{t+2}, 5, v{t+2}
    v_and_b32 v{t+3}, 3, v0
    v_lshlrev_b32 v{t+3}, 3, v{t+3}
    v_add3_u32 v{vWRD}, v{t+1}, v{t+2}, v{t+3}
    v_add_u32 v{vWRD}, {WB}, v{vWRD}
    v_lshrrev_b32 v{vHM}, 5, v0
    v_sub_u32 v{vHM}, 0, v{vHM}""")
    for r in range(ACC, ACC + 112): a(f"v_mov_b32 v{r}, 0")
    a(f"s_mov_b32 s{sRSL}, 0")
    a(f"s_mov_b32 s{sSTEP}, 0")
    a("s_waitcnt vmcnt(30)")
    a("s_barrier")
    a.vm_q = []
    read_x(a, 0)
    for i in range(PD): read_w(a, i)
    entry_q = list(a.lds_q)
    a(".p2align 6")
    a.label("K1_LOOP")
    for i in range(14):
        ts, T = divmod(i, 7)
        tags = [f"W{i%7}"]
        if T == 0: tags.append(f"X{ts}")
        a.wait_ds(*tags)
        b = WF + 4 * (i % 7)
        a(f"v_mfma_f32_32x32x16_bf16 v[{acc(T)}:{acc(T)+15}], v[{b}:{b+3}], v[{XF+4*ts}:{XF+4*ts+3}], v[{acc(T)}:{acc(T)+15}]")
        if i == 1: read_x(a, 1)
        if i == 9:
            a(f"s_cmp_lt_u32 s{sSTEP}, 13")
            a("s_cbranch_scc0 K1_TAILWAIT")
            a("s_waitcnt vmcnt(24)")
            a.label("K1_WAITED")
            a("s_barrier")
            a(f"s_add_u32 s{sRSL}, s{sRSL}, 1")
            a(f"s_cmp_eq_u32 s{sRSL}, {NSL}")
            a(f"s_cselect_b32 s{sT2}, s57, s56")
            a(f"s_cselect_b32 s{sT3}, s59, s58")
            a(f"s_cselect_b32 s{sRSL}, 0, s{sRSL}")
            a(f"v_add_u32 v{vXRD}, s{sT2}, v{vXRD}")
            a(f"v_add_u32 v{vXRD+1}, s{sT2}, v{vXRD+1}")
            a(f"v_add_u32 v{vWRD}, s{sT3}, v{vWRD}")
            read_x(a, 0)
        read_w(a, (i + PD) % 14)
        if i in (10, 11, 12):
            if i == 10:
                a(f"s_cmp_lt_u32 s{sSTEP}, 12")
                a("s_cselect_b32 s55, 1, 0")
            a("s_cmp_eq_u32 s55, 0")
            a(f"s_cbranch_scc1 K1_NODMA{i}")
            dma_step(a, i - 10)
            a.label(f"K1_NODMA{i}")
    a(f"s_add_u32 s{sSTEP}, s{sSTEP}, 1")
    a(f"s_cmp_lt_u32 s{sSTEP}, 18")
    a("s_cbranch_scc1 K1_LOOP")
    assert a.lds_q == entry_q, (a.lds_q, entry_q)
    a("s_branch K1_EPI")
    a.label("K1_TAILWAIT")
    for st, n in ((13, 18), (14, 12), (15, 6)):
        a(f"s_cmp_eq_u32 s{sSTEP}, {st}")
        a(f"s_cbranch_scc0 K1_TW{st}")
        a(f"s_waitcnt vmcnt({n})")
        a("s_branch K1_WAITED")
        a.label(f"K1_TW{st}")
    a("s_waitcnt vmcnt(0)")
    a("s_branch K1_WAITED")
    a.label("K1_EPI")
    a.wait_ds_all()
    a.vm_q = []
    a("s_barrier")
    a("s_nop 7")
    a(f"s_cmp_eq_u32 s{sBR}, 0")
    a("s_cbranch_scc0 K1_EPI_B")
    a(f"s_mov_b32 s{sC0}, {hex(f32bits(QSCALE))}")
    a(f"s_mov_b32 s{sC0+1}, {hex(f32bits(QSCALE))}")
    TMP = 32
    PV = 152
    vW, vR = vT + 2, vT + 3
    a(f"""s_mul_i32 s{sT0}, s{sWV}, {32*PV}
    v_and_b32 v{vW}, 31, v0
    v_mul_u32_u24 v{vW}, {PV}, v{vW}
    v_and_b32 v{vT+4}, 8, v{vHM}
    v_add3_u32 v{vW}, v{vW}, v{vT+4}, s{sT0}
    v_lshrrev_b32 v{vT+4}, 4, v0
    v_lshlrev_b32 v{vT+4}, 3, v{vT+4}
    v_bfe_u32 v{vT+5}, v0, 2, 2
    v_add_u32 v{vT+4}, v{vT+4}, v{vT+5}
    v_mul_u32_u24 v{vT+4}, {PV}, v{vT+4}
    v_and_b32 v{vT+5}, 3, v0
    v_lshlrev_b32 v{vT+5}, 3, v{vT+5}
    v_add3_u32 v{vR}, v{vT+4}, v{vT+5}, s{sT0}""")
    for pi in range(9):
        s = greg(36 + 2 * pi)
        d = TMP + 2 * pi
        a(f"v_cvt_pk_bf16_f32 v{d}, v{s}, v{s+1}")
        a(f"v_cvt_pk_bf16_f32 v{d+1}, v{s+2}, v{s+3}")
        a.ds(f"ds_write_b64 v{vW}, v[{d}:{d+1}] offset:{16*pi}", "vw")
    VT = 96
    for sg in range(5):
        for u in range(2):
            a.ds(f"ds_read_b64_tr_b16 v[{VT+4*sg+2*u}:{VT+4*sg+2*u+1}], v{vR} offset:{u*4*PV + sg*32}", f"vt{sg}")
    for G in range(0, 18, 2):
        s = greg(G)
        a(f"v_pk_mul_f32 v[{s}:{s+1}], v[{s}:{s+1}], s[{sC0}:{sC0+1}]")
        a(f"v_pk_mul_f32 v[{s+2}:{s+3}], v[{s+2}:{s+3}], s[{sC0}:{sC0+1}]")
    C, X0, X1 = pack_part(a, 0, TMP)
    store_q(a, WS_QA, C, X0, X1)
    C, X0, X1 = pack_part(a, 18, 64)
    vm, vx = vT, vT + 1
    a(f"""v_and_b32 v{vx}, 31, v0
    v_lshlrev_b32 v{vx}, 2, v{vx}
    v_and_b32 v{vT+6}, {2*HS}, v{vHM}
    v_add_u32 v{vx}, v{vx}, v{vT+6}
    s_mul_i32 s{sT0}, s{sG}, {4*HS}
    s_lshr_b32 s{sT1}, s{sTB}, 2
    s_mul_i32 s{sT1}, s{sT1}, {CH}
    s_add_u32 s{sT3}, s{sT0}, s{sT1}
    s_and_b32 s{sT1}, s{sTB}, 3
    s_lshl_b32 s{sT1}, s{sT1}, 2
    s_add_u32 s{sT1}, s{sT1}, s{sWV}
    s_lshl_b32 s{sT2}, s{sT1}, 10
    s_add_u32 s{sT0}, s{sT3}, s{sT2}
    s_lshl_b32 s{sT2}, s{sT1}, 7
    s_add_u32 s{sT2}, s{sT2}, s{sT3}
    s_add_u32 s{sT2}, s{sT2}, {KX_OFF}""")
    if WS_KV: raise NotImplementedError
    for j in range(4):
        a.vm(f"buffer_store_dwordx4 v[{C[j]}:{C[j]+3}], v{vm}, s[{sWS}:{sWS+3}], s{sT0} offen")
        if j == 0: a.vm(f"buffer_store_dword v{X0}, v{vx}, s[{sWS}:{sWS+3}], s{sT2} offen")
        if j == 1: a.vm(f"buffer_store_dword v{X1}, v{vx}, s[{sWS}:{sWS+3}], s{sT2} offen")
        if j < 3: a(f"s_add_u32 s{sT0}, s{sT0}, {HS}")
        if j == 0: a(f"s_add_u32 s{sT2}, s{sT2}, {HS}")
    a(f"""s_and_b32 s{sT1}, s{sTB}, 3
    s_lshl_b32 s{sT1}, s{sT1}, 3
    s_mul_i32 s{sT2}, s{sT1}, {VB}
    s_add_u32 s{sT3}, s{sT3}, s{sT2}
    s_add_u32 s{sT3}, s{sT3}, {V_OFF}
    s_mul_i32 s{sT2}, s{sWV}, {2*VB}
    s_add_u32 s{sT0}, s{sT3}, s{sT2}
    v_lshrrev_b32 v{vT+6}, 5, v0
    v_mul_u32_u24 v{vT+6}, {VB}, v{vT+6}
    v_bfe_u32 v{vT+7}, v0, 4, 1
    v_mul_u32_u24 v{vT+7}, 304, v{vT+7}
    v_add_u32 v{vT+6}, v{vT+6}, v{vT+7}
    v_and_b32 v{vT+7}, 15, v0
    s_mov_b32 s{sT1}, {HS-288}""")
    for sg in range(5):
        g0 = vT + 8 + 2 * (sg & 1)
        a(f"""v_add_u32 v{g0}, {16*sg}, v{vT+7}
        v_mul_u32_u24 v{g0+1}, 57, v{g0}
        v_lshrrev_b32 v{g0+1}, 10, v{g0+1}
        v_mul_lo_u32 v{g0+1}, v{g0+1}, s{sT1}
        v_lshlrev_b32 v{g0}, 4, v{g0}
        v_add3_u32 v{g0}, v{g0}, v{g0+1}, v{vT+6}""")
        if sg == 4:
            a(f"v_bfe_u32 v{g0+1}, v0, 3, 1")
            a(f"v_lshlrev_b32 v{g0+1}, 31, v{g0+1}")
            a(f"v_or_b32 v{g0}, v{g0}, v{g0+1}")
        a.wait_ds(f"vt{sg}")
        a.vm(f"buffer_store_dwordx4 v[{VT+4*sg}:{VT+4*sg+3}], v{g0}, s[{sWS}:{sWS+3}], s{sT0} offen")
    a(f"s_cmp_eq_u32 s{sWV}, 0")
    a("s_cbranch_scc0 K1_END")
    a(f"""v_lshrrev_b32 v{vT+8}, 4, v0
    s_mov_b32 s{sT1}, {HS}
    v_mul_lo_u32 v{vT+8}, v{vT+8}, s{sT1}
    v_bfe_u32 v{vT+9}, v0, 1, 3
    v_mul_u32_u24 v{vT+9}, {VB}, v{vT+9}
    v_and_b32 v{vT+10}, 1, v0
    v_mul_u32_u24 v{vT+10}, 304, v{vT+10}
    v_add3_u32 v{vT+8}, v{vT+8}, v{vT+9}, v{vT+10}
    v_mov_b32 v32, 0x3f803f80
    v_mov_b32 v33, 0x3f803f80
    v_mov_b32 v34, 0x3f803f80
    v_mov_b32 v35, 0x3f803f80
    buffer_store_dwordx4 v[32:35], v{vT+8}, s[{sWS}:{sWS+3}], s{sT3} offen offset:288
    s_endpgm""")
    a.label("K1_EPI_B")
    a.lds_q = []; a.vm_q = []
    a(f"s_mov_b32 s{sC0}, {hex(f32bits(LOG2E))}")
    a(f"s_mov_b32 s{sC0+1}, {hex(f32bits(LOG2E))}")
    a(f"s_mov_b32 s{sC1}, {hex(f32bits(1e-6))}")
    a(f"s_mov_b32 s{sC1+1}, {hex(f32bits(1e-6))}")
    PB = 296
    vW = vT + 2
    a(f"""s_lshl_b32 s{sT0}, s{sWV}, 5
    v_and_b32 v{vW}, 31, v0
    v_add_u32 v{vW}, s{sT0}, v{vW}
    v_mul_u32_u24 v{vW}, {PB}, v{vW}
    v_mov_b32 v{vT+4}, 0x3f803f80
    v_mov_b32 v{vT+5}, 0x3f803f80""")
    a.ds(f"ds_write_b64 v{vW}, v[{vT+4}:{vT+5}] offset:288", "st")
    a(f"v_and_b32 v{vT+6}, 8, v{vHM}")
    a(f"v_add_u32 v{vW}, v{vW}, v{vT+6}")
    for pi in range(9):
        s = greg(36 + 2 * pi)
        d = 32 + 2 * pi
        a(f"v_cvt_pk_bf16_f32 v{d}, v{s}, v{s+1}")
        a(f"v_cvt_pk_bf16_f32 v{d+1}, v{s+2}, v{s+3}")
        a.ds(f"ds_write_b64 v{vW}, v[{d}:{d+1}] offset:{16*(9+pi)}", "st")
    kregs = []
    for G in range(18, 36, 2): kregs += [greg(G), greg(G) + 2]
    phi(a, kregs)
    for pi in range(9):
        s = greg(18 + 2 * pi)
        d = 64 + 2 * pi
        a(f"v_cvt_pk_bf16_f32 v{d}, v{s}, v{s+1}")
        a(f"v_cvt_pk_bf16_f32 v{d+1}, v{s+2}, v{s+3}")
        a.ds(f"ds_write_b64 v{vW}, v[{d}:{d+1}] offset:{16*pi}", "st")
    a.wait_ds_all()
    a("s_barrier")
    vA, vB = vT + 3, vT + 4
    a(f"""s_mul_i32 s{sT0}, s{sWV}, 18
    s_lshr_b32 s{sT0}, s{sT0}, 2
    v_lshrrev_b32 v{vT+5}, 5, v0
    v_lshlrev_b32 v{vT+5}, 3, v{vT+5}
    v_bfe_u32 v{vT+6}, v0, 2, 2
    v_add_u32 v{vT+5}, v{vT+5}, v{vT+6}
    v_mul_u32_u24 v{vT+5}, {PB}, v{vT+5}
    v_bfe_u32 v{vT+6}, v0, 4, 1
    v_lshlrev_b32 v{vT+6}, 2, v{vT+6}
    v_and_b32 v{vT+7}, 3, v0
    v_add_u32 v{vT+6}, v{vT+6}, v{vT+7}
    v_add_u32 v{vT+7}, s{sT0}, v{vT+6}
    v_lshl_add_u32 v{vA}, v{vT+7}, 3, v{vT+5}
    v_add_u32 v{vT+7}, 18, v{vT+7}
    v_cmp_eq_u32 vcc, 5, v{vT+6}
    v_mov_b32 v{vT+8}, 36
    s_nop 0
    v_cndmask_b32 v{vT+7}, v{vT+7}, v{vT+8}, vcc
    v_lshl_add_u32 v{vB}, v{vT+7}, 3, v{vT+5}""")
    KA, KBr, KD = 96, 104, 112
    def rd(tau):
        for u in range(2):
            off = tau * 16 * PB + u * 4 * PB
            a.ds(f"ds_read_b64_tr_b16 v[{KA+4*(tau&1)+2*u}:{KA+4*(tau&1)+2*u+1}], v{vA} offset:{off}", f"kv{tau}")
            a.ds(f"ds_read_b64_tr_b16 v[{KBr+4*(tau&1)+2*u}:{KBr+4*(tau&1)+2*u+1}], v{vB} offset:{off}", f"kv{tau}")
    rd(0); rd(1)
    qregs = []
    for G in range(0, 18, 2): qregs += [greg(G), greg(G) + 2]
    phi(a, qregs)
    for tau in range(8):
        a.wait_ds(f"kv{tau}")
        c = "0" if tau == 0 else f"v[{KD}:{KD+15}]"
        a(f"v_mfma_f32_32x32x16_bf16 v[{KD}:{KD+15}], v[{KA+4*(tau&1)}:{KA+4*(tau&1)+3}], v[{KBr+4*(tau&1)}:{KBr+4*(tau&1)+3}], {c}")
        if tau + 2 < 8: rd(tau + 2)
    C, X0, X1 = pack_part(a, 0, 32)
    store_q(a, WS_PQ, C, X0, X1)
    g0 = vT + 4
    a(f"""s_and_b32 s{sT0}, s{sWV}, 1
    s_lshl_b32 s{sT0}, s{sT0}, 1
    v_and_b32 v{g0}, 31, v0
    v_subrev_u32 v{g0+1}, s{sT0}, v{g0}
    v_cmp_gt_u32 vcc, 18, v{g0+1}
    v_mov_b32 v{g0+2}, {INVALID}
    v_mul_u32_u24 v{g0+1}, 80, v{g0+1}
    v_cndmask_b32 v{g0+1}, v{g0+2}, v{g0+1}, vcc
    v_cmp_eq_u32 vcc, 20, v{g0}
    v_mov_b32 v{g0+2}, {18*80}
    s_nop 0
    v_cndmask_b32 v{g0+1}, v{g0+1}, v{g0+2}, vcc
    v_and_b32 v{g0+2}, 16, v{vHM}
    v_add_u32 v{g0+2}, v{g0+1}, v{g0+2}
    v_and_b32 v{g0+3}, {INVALID}, v{vHM}
    v_or_b32 v{g0+3}, v{g0+3}, v{g0+2}
    s_lshl_b32 s{sT0}, s{sG}, 2
    s_add_u32 s{sT0}, s{sT0}, s{sWV}
    s_mul_i32 s{sT0}, s{sT0}, {KVP_H}
    s_mul_i32 s{sT1}, s{sTB}, {KVP_TB}
    s_add_u32 s{sT0}, s{sT0}, s{sT1}
    s_add_u32 s{sT0}, s{sT0}, {WS_KVP}""")
    a(f"buffer_store_dwordx4 v[{KD}:{KD+3}], v{g0+2}, s[{sWS}:{sWS+3}], s{sT0} offen")
    a(f"buffer_store_dwordx4 v[{KD+4}:{KD+7}], v{g0+2}, s[{sWS}:{sWS+3}], s{sT0} offen offset:32")
    a(f"buffer_store_dwordx4 v[{KD+8}:{KD+11}], v{g0+3}, s[{sWS}:{sWS+3}], s{sT0} offen offset:64")
    a.label("K1_END")
    a("s_endpgm")
    return a.text(), descriptor(NAME, 240), LDS_BYTES
```

```python
from asmlib import *
from layout import *

NAME = "attn_kernel"
KVB = 4 * CH
LDS_BYTES = KVB + 2048
sWS = 8
sH, sQB, sWV, sCH = 12, 13, 14, 15
sT0, sT1, sT2, sT3 = 16, 17, 18, 19
sOO, sOX = 20, 21
sTILE = 22
sFLAG = 23
vL16 = 1
vQM = 4
vQX = 8
vIDX = 10
vKA, vKX, vVA = 11, 12, 13
vHM = 14
vT = 100
S = [16, 32]
O = 48
KF = [64, 68]
KX = [72, 74]
V0, V1 = 76, 80
KP = 84
vPM = 120
vPX = 124
NEGM = 128

def qk1(a, dst, kf, c="0"):
    a(f"v_mfma_f32_32x32x16_bf16 v[{dst}:{dst+15}], v[{kf}:{kf+3}], v[{vQM}:{vQM+3}], {c}")
def qk2(a, dst, kx):
    a(f"v_mfma_f32_32x32x8_bf16 v[{dst}:{dst+15}], v[{kx}:{kx+1}], v[{vQX}:{vQX+1}], v[{dst}:{dst+15}]")
def pv(a, vf, p):
    a(f"v_smfmac_f32_32x32x32_bf16 v[{O}:{O+15}], v[{vf}:{vf+3}], v[{p}:{p+7}], v{vIDX}")
def exps(a, base, lo, hi):
    for r in range(lo, hi): a(f"v_exp_f32 v{base+r}, v{base+r}")
def koff(t): return (t // 16) * CH + (t % 16) * 1024
def kxoff(t): return (t // 16) * CH + KX_OFF + (t % 16) * 128
def voff(t, half): return (t // 16) * CH + V_OFF + ((t % 16) * 2 + half) * VB
def rd_k(a, t, buf):
    a.ds(f"ds_read_b128 v[{KF[buf]}:{KF[buf]+3}], v{vKA} offset:{koff(t)}", f"K{buf}")
    a.ds(f"ds_read_b32 v{KX[buf]}, v{vKX} offset:{kxoff(t)}", f"X{buf}")
def rd_v(a, t, half):
    r = V0 if half == 0 else V1
    a.ds(f"ds_read_b128 v[{r}:{r+3}], v{vVA} offset:{voff(t, half)}", f"V{half}")

def normalize_store(a, src, eps, wsbase):
    t = vT
    if eps: a(f"v_add_f32 v{src+10}, {hex(f32bits(1e-6))}, v{src+10}")
    a(f"v_rcp_f32 v{t}, v{src+10}")
    a("s_nop 0")
    for r in range(0, 10, 2):
        a(f"v_mul_f32 v{src+r}, v{src+r}, v{t}")
        a(f"v_mul_f32 v{src+r+1}, v{src+r+1}, v{t}")
    for k in range(5):
        a(f"v_cvt_pk_bf16_f32 v{t+4+k}, v{src+2*k}, v{src+2*k+1}")
    a(f"s_add_u32 s{sT0}, s{sOO}, {wsbase}")
    a(f"s_add_u32 s{sT1}, s{sOX}, {wsbase}")
    a(f"buffer_store_dwordx4 v[{t+4}:{t+7}], v{t+2}, s[{sWS}:{sWS+3}], s{sT0} offen")
    a(f"buffer_store_dword v{t+8}, v{t+3}, s[{sWS}:{sWS+3}], s{sT1} offen")

def gen():
    a = Asm()
    a(f".globl {NAME}\n.p2align 8\n.type {NAME},@function")
    a.label(NAME)
    a("s_cmp_ge_u32 s2, 256")
    a("s_cbranch_scc1 K2_END")
    a("s_load_dwordx2 s[4:5], s[0:1], 64")
    a(f"""s_and_b32 s{sT0}, s2, 7
    s_lshr_b32 s{sT1}, s2, 3
    s_lshl_b32 s{sH}, s{sT0}, 2
    s_lshr_b32 s{sT2}, s{sT1}, 3
    s_add_u32 s{sH}, s{sH}, s{sT2}
    s_and_b32 s{sQB}, s{sT1}, 7
    v_lshrrev_b32 v1, 6, v0
    v_mov_b32 v2, v0
    v_readfirstlane_b32 s{sWV}, v1
    v_and_b32 v0, 63, v0
    v_lshlrev_b32 v{vL16}, 4, v0
    v_and_b32 v3, 31, v0
    v_lshlrev_b32 v3, 2, v3
    s_lshl_b32 s{sTILE}, s{sQB}, 3
    s_add_u32 s{sTILE}, s{sTILE}, s{sWV}
    s_lshl_b32 s{sT0}, s{sH}, 6
    s_add_u32 s{sT0}, s{sT0}, s{sTILE}
    s_mul_i32 s{sT3}, s{sT0}, {QT}
    s_waitcnt lgkmcnt(0)""")
    srd(a, sWS, 4, WS_BYTES)
    a(f"s_mov_b32 s24, s{sT3}")
    a(f"s_add_u32 s{sT0}, s{sT3}, {WS_QA}")
    a.vm(f"buffer_load_dwordx4 v[{vQM}:{vQM+3}], v{vL16}, s[{sWS}:{sWS+3}], s{sT0} offen", "q")
    a.vm(f"buffer_load_dword v{vQX}, v3, s[{sWS}:{sWS+3}], s{sT0} offen offset:1024", "q")
    a(f"s_mul_i32 s{sT0}, s{sH}, {HS}")
    a(f"s_lshl_b32 s{sT1}, s{sWV}, 10")
    a(f"s_add_u32 s{sT2}, s{sT1}, {32*1024}")
    a(f"s_min_u32 s{sT2}, s{sT2}, {36*1024}")
    for c in range(4):
        for m in range(5):
            if m < 4:
                a(f"s_add_u32 m0, s{sT1}, {c*CH + m*8192}")
            else:
                a(f"s_add_u32 m0, s{sT2}, {c*CH}")
            a(f"s_add_u32 s{sT3}, s{sT0}, m0")
            a.vm(f"buffer_load_dwordx4 v{vL16}, s[{sWS}:{sWS+3}], s{sT3} offen lds", f"c{c}")
    t = vT
    a(f"""v_lshrrev_b32 v{vHM}, 5, v0
    v_sub_u32 v{vHM}, 0, v{vHM}
    v_mov_b32 v{vKA}, v{vL16}
    v_mov_b32 v{vKX}, v3
    v_mov_b32 v{vIDX}, 0xdddddddd
    v_mov_b32 v{vQX+1}, 0
    v_mov_b32 v{KX[0]+1}, 0
    v_mov_b32 v{KX[1]+1}, 0""")
    a(f"""v_and_b32 v{t}, 31, v0
    v_mov_b32 v{t+1}, 0
    v_cmp_lt_u32 vcc, 27, v{t}
    v_mov_b32 v{t+2}, 4
    s_nop 0
    v_cndmask_b32 v{t+1}, v{t+1}, v{t+2}, vcc
    v_cmp_gt_u32 vcc, 19, v{t}
    s_nop 1
    v_cndmask_b32 v{t+1}, v{t+1}, v{t}, vcc
    v_mov_b32 v{t+2}, 18
    v_cmp_eq_u32 vcc, 19, v{t}
    s_nop 1
    v_cndmask_b32 v{t+1}, v{t+1}, v{t+2}, vcc
    v_cmp_eq_u32 vcc, 22, v{t}
    s_nop 1
    v_cndmask_b32 v{t+1}, v{t+1}, v{t+2}, vcc
    v_mov_b32 v15, v{t+1}
    v_lshlrev_b32 v{t+1}, 4, v{t+1}
    v_and_b32 v{t+2}, 304, v{vHM}
    v_add_u32 v{vVA}, v{t+1}, v{t+2}""")
    a(f"""v_bfe_u32 v{t}, v0, 4, 1
    v_mul_u32_u24 v{t}, {OT}, v{t}
    v_and_b32 v{t+1}, 15, v0
    v_lshlrev_b32 v{t+1}, 4, v{t+1}
    v_add_u32 v{t}, v{t}, v{t+1}
    v_and_b32 v{t+1}, 256, v{vHM}
    v_add_u32 v{t+2}, v{t}, v{t+1}
    v_and_b32 v{t+1}, {INVALID}, v{vHM}
    v_or_b32 v{t+3}, v{t}, v{t+1}
    s_mul_i32 s{sT0}, s{sTILE}, {2*OT}
    s_lshr_b32 s{sT1}, s{sH}, 1
    s_lshl_b32 s{sT1}, s{sT1}, 10
    s_and_b32 s{sT2}, s{sH}, 1
    s_lshl_b32 s{sT2}, s{sT2}, 9
    s_add_u32 s{sT1}, s{sT1}, s{sT2}
    s_add_u32 s{sOO}, s{sT0}, s{sT1}
    s_lshr_b32 s{sT1}, s{sH}, 4
    s_add_u32 s{sT1}, s{sT1}, 16
    s_lshl_b32 s{sT1}, s{sT1}, 10
    s_bfe_u32 s{sT2}, s{sH}, 0x20002
    s_lshl_b32 s{sT2}, s{sT2}, 8
    s_add_u32 s{sT1}, s{sT1}, s{sT2}
    s_and_b32 s{sT2}, s{sH}, 3
    s_lshl_b32 s{sT2}, s{sT2}, 2
    s_add_u32 s{sT1}, s{sT1}, s{sT2}
    s_add_u32 s{sOX}, s{sT0}, s{sT1}""")
    for r in range(16): a(f"v_mov_b32 v{O+r}, 0")
    for r in range(8, 16): a(f"v_mov_b32 v{S[1]+r}, 0")
    for r in range(4): a(f"v_mov_b32 v{V1+r}, 0")
    a(f"s_mov_b32 s{sCH}, 0")
    a.wait_vm("q", "c0")
    a(f"v_not_b32 v{t+5}, v{vHM}")
    a(f"v_and_b32 v{vQX}, v{vQX}, v{t+5}")
    a("s_barrier")
    rd_k(a, 0, 0); rd_k(a, 1, 1); rd_v(a, 0, 0)
    a.wait_ds("K0", "X0")
    qk1(a, S[0], KF[0]); qk2(a, S[0], KX[0])
    a("s_nop 7"); a("s_nop 7")
    entry_q = list(a.lds_q)
    a(".p2align 6")
    a.label("K2_LOOP")
    for tl in range(16):
        cur, nxt = tl & 1, (tl + 1) & 1
        if tl == 14:
            a(f"s_cmp_eq_u32 s{sCH}, 3")
            a("s_cbranch_scc1 K2_NOBAR")
            a(f"s_cmp_eq_u32 s{sCH}, 0")
            a("s_cbranch_scc0 K2_W1")
            a("s_waitcnt vmcnt(10)")
            a.label("K2_BAR")
            a("s_barrier")
            a.label("K2_NOBAR")
        if tl > 0: a.wait_ds("V1")
        elif "V1" in a.lds_q: a.wait_ds("V1")
        pv(a, V1, S[nxt] + 8)
        rd_v(a, tl, 1)
        exps(a, S[cur], 0, 4)
        a.wait_ds(f"K{nxt}", f"X{nxt}")
        qk1(a, S[nxt], KF[nxt])
        exps(a, S[cur], 4, 8)
        qk2(a, S[nxt], KX[nxt])
        rd_k(a, tl + 2, cur)
        exps(a, S[cur], 8, 12)
        a.wait_ds("V0")
        pv(a, V0, S[cur])
        exps(a, S[cur], 12, 16)
        rd_v(a, tl + 1, 0)
        if tl == 15:
            for r in (vKA, vKX, vVA): a(f"v_add_u32 v{r}, {CH}, v{r}")
            a.wait_ds("V1")
            a(f"s_add_u32 s{sCH}, s{sCH}, 1")
            a(f"s_cmp_lt_u32 s{sCH}, 4")
            a("s_cbranch_scc1 K2_LOOP")
    print("k2 entry", entry_q, "exit", a.lds_q)
    a("s_branch K2_FIN")
    a.label("K2_W1")
    a(f"s_cmp_eq_u32 s{sCH}, 1")
    a("s_cbranch_scc0 K2_W2")
    a("s_waitcnt vmcnt(5)")
    a("s_branch K2_BAR")
    a.label("K2_W2")
    a("s_waitcnt vmcnt(0)")
    a(f"s_add_u32 s{sT0}, s24, {WS_PQ}")
    a(f"buffer_load_dwordx4 v[{vPM}:{vPM+3}], v{vL16}, s[{sWS}:{sWS+3}], s{sT0} offen")
    a(f"buffer_load_dword v{vPX}, v3, s[{sWS}:{sWS+3}], s{sT0} offen offset:1024")
    a(f"s_mul_i32 s{sT0}, s{sH}, {KVP_H}")
    a(f"s_add_u32 s{sT0}, s{sT0}, {WS_KVP}")
    a(f"v_lshlrev_b32 v{vT+6}, 2, v2")
    a(f"v_cmp_gt_u32 vcc, 380, v2")
    a(f"v_mov_b32 v{vT+7}, {INVALID}")
    a("s_nop 0")
    a(f"v_cndmask_b32 v{vT+6}, v{vT+7}, v{vT+6}, vcc")
    for tb in range(16):
        a(f"buffer_load_dword v{KP+tb}, v{vT+6}, s[{sWS}:{sWS+3}], s{sT0} offen")
        if tb < 15: a(f"s_add_u32 s{sT0}, s{sT0}, {KVP_TB}")
    a("s_branch K2_BAR")
    a.label("K2_FIN")
    a.lds_q = []
    a("s_waitcnt lgkmcnt(0)")
    pv(a, V1, S[1] + 8)
    a("s_waitcnt vmcnt(0)")
    for k in (8, 4, 2, 1):
        for r in range(k): a(f"v_add_f32 v{KP+r}, v{KP+r}, v{KP+r+k}")
    t = vT + 6
    a(f"""v_mul_u32_u24 v{t}, 3277, v2
    v_lshrrev_b32 v{t}, 16, v{t}
    v_mul_u32_u24 v{t+1}, 20, v{t}
    v_sub_u32 v{t+1}, v2, v{t+1}
    s_and_b32 s{sT0}, s{sH}, 3""")
    tabs = {0: [0, 2, 1, 3, 4], 1: [4, 3, 0, 2, 1], 2: [3, 0, 2, 1, 4], 3: [4, 0, 2, 1, 3]}
    def enc(l): return sum(v << (4 * i) for i, v in enumerate(l))
    a(f"s_mov_b32 s{sT1}, {hex(enc(tabs[0]))}")
    for j in (1, 2, 3):
        a(f"s_cmp_eq_u32 s{sT0}, {j}")
        a(f"s_cselect_b32 s{sT1}, {hex(enc(tabs[j]))}, s{sT1}")
    a(f"""v_and_b32 v{t+2}, 28, v{t+1}
    v_bfe_u32 v{t+2}, s{sT1}, v{t+2}, 4
    v_and_b32 v{t+3}, 3, v{t+1}
    s_and_b32 s{sT2}, s{sT0}, 1
    s_lshl_b32 s{sT2}, s{sT2}, 1
    v_cmp_eq_u32 vcc, 4, v{t+2}
    v_subrev_u32 v{t+4}, s{sT2}, v{t+3}
    s_nop 0
    v_cndmask_b32 v{t+3}, v{t+3}, v{t+4}, vcc
    v_cmp_gt_u32 s[26:27], 2, v{t+4}
    v_lshlrev_b32 v{t+2}, 3, v{t+2}
    v_lshl_add_u32 v{t+2}, v{t+3}, 1, v{t+2}
    v_lshl_add_u32 v{t+2}, v{t}, 6, v{t+2}
    v_add_u32 v{t+2}, {KVB}, v{t+2}
    s_andn2_b64 s[28:29], vcc, s[26:27]
    v_cmp_gt_u32 vcc, 380, v2
    v_cvt_pk_bf16_f32 v{KP}, v{KP}, v{KP}
    s_andn2_b64 s[28:29], vcc, s[28:29]
    s_and_saveexec_b64 s[30:31], s[28:29]
    s_cbranch_execz K2_NOSTG
    ds_write_b16 v{t+2}, v{KP}""")
    a.label("K2_NOSTG")
    a("s_mov_b64 exec, s[30:31]")
    a("s_waitcnt lgkmcnt(0)")
    a("s_barrier")
    a(f"v_lshlrev_b32 v{t}, 6, v15")
    a(f"v_add_u32 v{t}, {KVB}, v{t}")
    a(f"v_and_b32 v{t+1}, 16, v{vHM}")
    a(f"v_add_u32 v{t+1}, v{t}, v{t+1}")
    a(f"ds_read_b128 v[{KF[0]}:{KF[0]+3}], v{t+1}")
    a(f"ds_read_b32 v{KX[0]}, v{t} offset:32")
    a(f"v_add_f32_e64 v{t+2}, abs(v{O}), abs(v{O+1})")
    for r in range(2, 10): a(f"v_add_f32_e64 v{t+2}, v{t+2}, abs(v{O+r})")
    a(f"s_mov_b32 s25, {hex(f32bits(2.0**60))}")
    a(f"s_mov_b32 s32, {hex(f32bits(2.0**-60))}")
    a(f"v_cmp_gt_f32 vcc, 0x7f800000, v{t+2}")
    a(f"v_cmp_le_f32 s[26:27], v{O+10}, s25")
    a(f"v_cmp_ge_f32 s[28:29], v{O+10}, s32")
    a("s_nop 3")
    a(f"s_and_b64 vcc, vcc, s[26:27]")
    a(f"s_and_b64 vcc, vcc, s[28:29]")
    a("s_cmp_eq_u64 vcc, exec")
    a("s_cbranch_scc0 K2_SLOW")
    a.label("K2_NORM")
    normalize_store(a, O, False, WS_OA)
    a(f"v_mov_b32 v{vPX+1}, 0")
    a(f"v_not_b32 v{vT+10}, v{vHM}")
    a(f"v_and_b32 v{vPX}, v{vPX}, v{vT+10}")
    a("s_waitcnt lgkmcnt(0)")
    a(f"v_mfma_f32_32x32x16_bf16 v[{S[0]}:{S[0]+15}], v[{KF[0]}:{KF[0]+3}], v[{vPM}:{vPM+3}], 0")
    a(f"v_mfma_f32_32x32x8_bf16 v[{S[0]}:{S[0]+15}], v[{KX[0]}:{KX[0]+1}], v[{vPX}:{vPX+1}], v[{S[0]}:{S[0]+15}]")
    a("s_nop 7"); a("s_nop 7")
    normalize_store(a, S[0], True, WS_OB)
    a.label("K2_END")
    a("s_endpgm")
    a.label("K2_SLOW")
    a("s_waitcnt lgkmcnt(0)")
    mx = vT + 11
    a(f"v_subrev_u32 v{vKA}, {4*CH}, v{vKA}")
    a(f"v_subrev_u32 v{vKX}, {4*CH}, v{vKX}")
    a(f"v_subrev_u32 v{vVA}, {4*CH}, v{vVA}")
    a(f"v_mov_b32 v{mx}, 0xff800000")
    for pas in range(2):
        a(f"v_mov_b32 v{vT+12}, v{vKA}")
        a(f"v_mov_b32 v{vT+13}, v{vKX}")
        a(f"v_mov_b32 v{vT+14}, v{vVA}")
        a(f"s_mov_b32 s{sCH}, 0")
        if pas == 1:
            for r in range(16): a(f"v_mov_b32 v{O+r}, 0")
        a.label(f"K2_SL{pas}")
        a(f"ds_read_b128 v[{KF[1]}:{KF[1]+3}], v{vT+12}")
        a(f"ds_read_b32 v{KX[1]}, v{vT+13} offset:{KX_OFF}")
        if pas == 1:
            a(f"ds_read_b128 v[{V0}:{V0+3}], v{vT+14} offset:{V_OFF}")
            a(f"ds_read_b128 v[{V1}:{V1+3}], v{vT+14} offset:{V_OFF+VB}")
        a("s_waitcnt lgkmcnt(0)")
        qk1(a, S[0], KF[1], "0" if pas == 0 else f"v[{NEGM}:{NEGM+15}]")
        qk2(a, S[0], KX[1])
        a("s_nop 7"); a("s_nop 7")
        if pas == 0:
            for r in range(0, 16, 2): a(f"v_max3_f32 v{mx}, v{mx}, v{S[0]+r}, v{S[0]+r+1}")
        else:
            exps(a, S[0], 0, 16)
            a("s_nop 1")
            pv(a, V0, S[0]); pv(a, V1, S[0] + 8)
        a(f"s_add_u32 s{sCH}, s{sCH}, 1")
        a(f"s_and_b32 s{sT0}, s{sCH}, 15")
        a(f"s_cmp_eq_u32 s{sT0}, 0")
        a(f"s_mov_b32 s{sT1}, 1024")
        a(f"s_mov_b32 s{sT2}, 128")
        a(f"s_mov_b32 s{sT3}, {2*VB}")
        a(f"s_cbranch_scc0 K2_SLA{pas}")
        a(f"s_mov_b32 s{sT1}, {CH - 15*1024}")
        a(f"s_mov_b32 s{sT2}, {CH - 15*128}")
        a(f"s_mov_b32 s{sT3}, {CH - 15*2*VB}")
        a.label(f"K2_SLA{pas}")
        a(f"v_add_u32 v{vT+12}, s{sT1}, v{vT+12}")
        a(f"v_add_u32 v{vT+13}, s{sT2}, v{vT+13}")
        a(f"v_add_u32 v{vT+14}, s{sT3}, v{vT+14}")
        a(f"s_cmp_lt_u32 s{sCH}, 64")
        a(f"s_cbranch_scc1 K2_SL{pas}")
        if pas == 0:
            a(f"v_mov_b32 v{vT+15}, v{mx}")
            a("s_nop 1")
            a(f"v_permlane32_swap_b32 v{mx}, v{vT+15}")
            a("s_nop 1")
            a(f"v_max_f32 v{mx}, v{mx}, v{vT+15}")
            for r in range(16): a(f"v_sub_f32 v{NEGM+r}, 0, v{mx}")
    a("s_nop 7"); a("s_nop 7")
    a("s_branch K2_NORM")
    return a.text(), descriptor(NAME, 144), LDS_BYTES
```

```python
from asmlib import *
from layout import *

NAME = "oproj_kernel"
WROW = 160
WSTEP = 32 * WROW
STG = 18 * WSTEP
SP = 176
LDS_BYTES = STG + 4 * 32 * SP + 1024
sO, sW, sOUT = 8, 12, 16
sWV, sTB, sCB, sBR = 20, 21, 22, 23
sT0, sT1, sT2, sT3 = 24, 25, 26, 27
vL16 = 1
vW = 2
vE = 7
vRD = 10
vT = 12
ACC = 24
WF = 64
OF = 104

def gen():
    a = Asm()
    a(f".globl {NAME}\n.p2align 8\n.type {NAME},@function")
    a.label(NAME)
    a("s_cmp_ge_u32 s2, 256")
    a("s_cbranch_scc1 K3_END")
    a("s_load_dwordx2 s[40:41], s[0:1], 16")
    a("s_load_dwordx2 s[42:43], s[0:1], 40")
    a("s_load_dwordx2 s[44:45], s[0:1], 48")
    a("s_load_dwordx2 s[46:47], s[0:1], 64")
    t = vT
    a(f"""s_and_b32 s{sT0}, s2, 7
    s_lshr_b32 s{sT1}, s2, 3
    s_lshr_b32 s{sBR}, s{sT0}, 2
    s_and_b32 s{sT0}, s{sT0}, 3
    s_lshl_b32 s{sT0}, s{sT0}, 2
    s_and_b32 s{sT2}, s{sT1}, 3
    s_add_u32 s{sTB}, s{sT0}, s{sT2}
    s_lshr_b32 s{sCB}, s{sT1}, 2
    v_lshrrev_b32 v1, 6, v0
    v_and_b32 v0, 63, v0
    v_readfirstlane_b32 s{sWV}, v1
    v_lshlrev_b32 v{vL16}, 4, v0""")
    def split(sig):
        a(f"""v_mul_u32_u24 v{t+1}, 6554, v{sig}
        v_lshrrev_b32 v{t+1}, 16, v{t+1}
        v_mul_u32_u24 v{t+2}, 10, v{t+1}
        v_sub_u32 v{t+2}, v{sig}, v{t+2}
        v_min_u32 v{t+2}, 8, v{t+2}
        v_bfe_u32 v{t+3}, v{t+1}, 4, 1
        v_bfe_u32 v{t+4}, v{t+1}, 2, 2
        v_and_b32 v{t+5}, 3, v{t+1}""")
    for m in range(5):
        a(f"v_add_u32 v{t}, {64*m}, v0")
        split(t)
        a(f"""v_lshrrev_b32 v{t+6}, 1, v{t+4}
        v_mul_u32_u24 v{t+6}, 18, v{t+6}
        v_lshl_add_u32 v{t+6}, v{t+3}, 3, v{t+6}
        v_and_b32 v{t+7}, 1, v{t+4}
        v_lshl_add_u32 v{t+6}, v{t+7}, 2, v{t+6}
        v_add_u32 v{t+6}, v{t+6}, v{t+5}
        v_mul_u32_u24 v{t+6}, 1152, v{t+6}
        v_lshl_add_u32 v{vW+m}, v{t+2}, 4, v{t+6}""")
    for n in range(3):
        a(f"""s_add_u32 s{sT0}, s{sWV}, {4*n}
        s_min_u32 s{sT0}, s{sT0}, 9
        s_cmp_ge_u32 s{sT0}, 5
        s_cselect_b32 s{sT1}, 5, 0
        s_cselect_b32 s{sT2}, 288, 0
        s_sub_u32 s{sT1}, s{sT0}, s{sT1}
        s_lshl_b32 s{sT1}, s{sT1}, 6
        v_add_u32 v{t}, s{sT1}, v0""")
        split(t)
        a(f"""v_mul_u32_u24 v{t+6}, 72, v{t+4}
        v_mul_u32_u24 v{t+7}, 36, v{t+3}
        v_add3_u32 v{t+6}, v{t+6}, v{t+7}, s{sT2}
        v_lshrrev_b32 v{t+7}, 1, v{t+5}
        v_mul_u32_u24 v{t+7}, 18, v{t+7}
        v_and_b32 v{t+8}, 1, v{t+5}
        v_add3_u32 v{t+6}, v{t+6}, v{t+7}, v{t+8}
        v_add_u32 v{t+6}, 16, v{t+6}
        v_mul_u32_u24 v{t+6}, 1152, v{t+6}
        v_lshl_add_u32 v{vE+n}, v{t+2}, 4, v{t+6}""")
    a("s_waitcnt lgkmcnt(0)")
    a(f"""s_cmp_eq_u32 s{sBR}, 0
    s_cselect_b32 s4, s40, s42
    s_cselect_b32 s5, s41, s43
    s_mov_b32 s{sT3}, {WS_OA}
    s_cselect_b32 s{sT3}, s{sT3}, {WS_OB}""")
    srd(a, sO, 46, WS_BYTES); srd(a, sW, 4, WO_BYTES); srd(a, sOUT, 44, OUT_BYTES)
    a(f"""s_lshl_b32 s{sT0}, s{sTB}, 3
    s_lshl_b32 s{sT1}, s{sWV}, 1
    s_add_u32 s{sT0}, s{sT0}, s{sT1}
    s_mul_i32 s{sT0}, s{sT0}, {OT}
    s_add_u32 s30, s{sT0}, s{sT3}
    s_add_u32 s33, s30, {OT}
    s_mul_i32 s31, s{sWV}, {36*1152}
    s_mul_i32 s{sT0}, s{sCB}, 144
    s_add_u32 s31, s31, s{sT0}
    s_mul_i32 s32, s{sWV}, {WSTEP}""")
    def oload(s):
        for tt in range(2):
            r = OF + 4 * (2 * s + tt)
            so = "s30" if tt == 0 else "s33"
            a.vm(f"buffer_load_dwordx4 v[{r}:{r+3}], v{vL16}, s[{sO}:{sO+3}], {so} offen offset:{(s % 4) * 1024}", f"g{min(s//4, 4)}")
        if s % 4 == 3:
            a("s_add_u32 s30, s30, 4096"); a("s_add_u32 s33, s33, 4096")
    for G in range(4):
        for m in range(5):
            a(f"s_add_u32 m0, s32, {m*1024}")
            a("s_nop 0")
            a.vm(f"buffer_load_dwordx4 v{vW+m}, s[{sW}:{sW+3}], s31 offen lds", f"g{G}")
        a(f"s_add_u32 s31, s31, {4*36*1152}")
        a(f"s_add_u32 s32, s32, {4*WSTEP}")
        for s in range(4 * G, 4 * G + 4): oload(s)
    a(f"s_mul_i32 s31, s{sCB}, 144")
    for n in range(3):
        a(f"""s_add_u32 s{sT0}, s{sWV}, {4*n}
        s_min_u32 s{sT0}, s{sT0}, 9
        s_lshl_b32 s{sT0}, s{sT0}, 10
        s_add_u32 m0, s{sT0}, {16*WSTEP}
        s_nop 0""")
        a.vm(f"buffer_load_dwordx4 v{vE+n}, s[{sW}:{sW+3}], s31 offen lds", "g4")
    oload(16); oload(17)
    a(f"""v_lshrrev_b32 v{t}, 2, v0
    v_mul_u32_u24 v{t}, {WROW}, v{t}
    v_and_b32 v{t+1}, 3, v0
    v_lshl_add_u32 v{vRD}, v{t+1}, 3, v{t}
    v_add_u32 v{vRD+1}, {9*WSTEP}, v{vRD}""")
    def rdw(s):
        buf = s & 1
        for ct in range(5):
            for u in range(2):
                r = WF + 20 * buf + 4 * ct + 2 * u
                base = vRD if s < 9 else vRD + 1
                off = (s - (0 if s < 9 else 9)) * WSTEP + u * 16 * WROW + ct * 32
                a.ds(f"ds_read_b64_tr_b16 v[{r}:{r+1}], v{base} offset:{off}", f"w{s}_{ct}")
    for s in range(18):
        if s % 4 == 0:
            a.wait_vm(f"g{min(s//4, 4)}")
            a("s_barrier")
            rdw(s)
        nxt_ok = (s + 1 < 18) and ((s + 1) % 4 != 0)
        buf = s & 1
        k = 0
        for ct in range(5):
            a.wait_ds(f"w{s}_{ct}")
            for tt in range(2):
                d = ACC + 4 * (5 * tt + ct)
                w = WF + 20 * buf + 4 * ct
                o = OF + 4 * (2 * s + tt)
                c = "0" if s == 0 else f"v[{d}:{d+3}]"
                a(f"v_mfma_f32_16x16x32_bf16 v[{d}:{d+3}], v[{w}:{w+3}], v[{o}:{o+3}], {c}")
            if nxt_ok:
                bufn = (s + 1) & 1
                for u in range(2):
                    r = WF + 20 * bufn + 4 * ct + 2 * u
                    base = vRD if s + 1 < 9 else vRD + 1
                    off = (s + 1 - (0 if s + 1 < 9 else 9)) * WSTEP + u * 16 * WROW + ct * 32
                    a.ds(f"ds_read_b64_tr_b16 v[{r}:{r+1}], v{base} offset:{off}", f"w{s+1}_{ct}")
    a(f"""s_mul_i32 s{sT0}, s{sWV}, {32*SP}
    s_add_u32 s{sT0}, s{sT0}, {STG}
    v_and_b32 v{t}, 15, v0
    v_mul_u32_u24 v{t}, {SP}, v{t}
    v_lshrrev_b32 v{t+1}, 4, v0
    v_lshlrev_b32 v{t+1}, 3, v{t+1}
    v_add3_u32 v{t}, v{t}, v{t+1}, s{sT0}
    s_nop 4""")
    for tt in range(2):
        for ct in range(5):
            d = ACC + 4 * (5 * tt + ct)
            p = WF + 2 * (5 * tt + ct)
            a(f"v_cvt_pk_bf16_f32 v{p}, v{d}, v{d+1}")
            a(f"v_cvt_pk_bf16_f32 v{p+1}, v{d+2}, v{d+3}")
            a.ds(f"ds_write_b64 v{t}, v[{p}:{p+1}] offset:{tt*16*SP + ct*32}", "sw")
    a(f"""s_lshl_b32 s{sT1}, s{sTB}, 7
    s_lshl_b32 s{sT2}, s{sWV}, 5
    s_add_u32 s{sT1}, s{sT1}, s{sT2}
    s_mul_i32 s{sT1}, s{sT1}, 2304
    s_mul_i32 s{sT2}, s{sBR}, 1152
    s_add_u32 s{sT1}, s{sT1}, s{sT2}
    s_mul_i32 s{sT2}, s{sCB}, 144
    s_add_u32 s{sT1}, s{sT1}, s{sT2}""")
    RD = 104
    for n in range(5):
        g = t + 2 + 0
        a(f"""v_add_u32 v{g}, {64*n}, v0
        v_mul_u32_u24 v{g+1}, 7282, v{g}
        v_lshrrev_b32 v{g+1}, 16, v{g+1}
        v_mul_u32_u24 v{g+2}, 9, v{g+1}
        v_sub_u32 v{g+2}, v{g}, v{g+2}
        v_lshlrev_b32 v{g+2}, 4, v{g+2}
        v_mul_u32_u24 v{g+3}, {SP}, v{g+1}
        v_add3_u32 v{g+3}, v{g+3}, v{g+2}, s{sT0}
        v_mul_u32_u24 v{g+1}, 2304, v{g+1}
        v_add_u32 v{RD+20+n}, v{g+1}, v{g+2}""")
        if n == 4:
            a(f"v_bfe_u32 v{g}, v0, 5, 1")
            a(f"v_lshlrev_b32 v{g}, 31, v{g}")
            a(f"v_or_b32 v{RD+20+n}, v{RD+20+n}, v{g}")
        a.ds(f"ds_read_b128 v[{RD+4*n}:{RD+4*n+3}], v{g+3}", f"r{n}")
    for n in range(5):
        a.wait_ds(f"r{n}")
        a(f"buffer_store_dwordx4 v[{RD+4*n}:{RD+4*n+3}], v{RD+20+n}, s[{sOUT}:{sOUT+3}], s{sT1} offen")
    a.label("K3_END")
    a("s_endpgm")
    return a.text(), descriptor(NAME, 248), LDS_BYTES
```

```python
S = 2048; D = 576; H = 32; DH = 18
WS_KV = 0x0
HS = 151552
CH = 37888
KX_OFF = 16384
V_OFF = 18432
VB = 608
WS_QA = 0x500000
QHS = 73728
QT = 1152
WS_PQ = 0x780000
WS_KVP = 0xA00000
KVP_H = 24576
KVP_TB = 1536
WS_OA = 0xB00000
WS_OB = 0xE00000
OT = 18432
WS_BYTES = 0x2000000
INVALID = 0x80000000
X_BYTES = S * D * 2
W_BYTES = D * 3 * D * 2
WO_BYTES = D * D * 2
OUT_BYTES = S * 2 * D * 2
LOG2E = 1.4426950408889634
import struct
def f32bits(x): return struct.unpack("<I", struct.pack("<f", x))[0]
QSCALE = LOG2E / (DH ** 0.5)
```

```python
import k1, k2, k3, sys
from layout import *
HEADER = open("concat_heads__mha_block__linear_attn_block__prompt.s.ref").read().split("; Override launch geometry")[0]
def build():
    parts = [k1.gen(), k2.gen(), k3.gen()]
    names = [k1.NAME, k2.NAME, k3.NAME]
    blocks = [256, 512, 256]
    s = HEADER
    s += "; Three launches: QKV projections (both branches) -> attention + linear-attention finish -> output projections.\n"
    s += "; Generated by a hand-written Python generator (register maps and schedules are in its comments).\n"
    for n, p, b in zip(names, parts, blocks):
        s += f"; @launch kernel={n} grid=(256,1,1) block=({b},1,1) lds={p[2]}\n"
    s += '.amdgcn_target "amdgcn-amd-amdhsa--gfx950"\n.text\n'
    for p in parts: s += p[0]
    s += '.section .rodata,"a"\n'
    for p in parts: s += ".p2align 6\n" + p[1]
    return s
if __name__ == "__main__":
    out = sys.argv[1] if len(sys.argv) > 1 else "concat_heads__mha_block__linear_attn_block__prompt.s"
    open(out, "w").write(build())
    print("wrote", out)
```

```python
class Asm:
    def __init__(self):
        self.lines = []
        self.lds_q = []
        self.vm_q = []
    def __call__(self, s):
        for l in s.strip("\n").split("\n"):
            self.lines.append("  " + l.strip() if not l.strip().endswith(":") else l.strip())
    def label(self, name): self.lines.append(name + ":")
    def comment(self, s): self.lines.append("  ; " + s)
    def ds(self, instr, tag=None):
        self(instr); self.lds_q.append(tag)
    def wait_ds(self, *tags):
        last = -1
        for i, t in enumerate(self.lds_q):
            if t in tags: last = i
        if last < 0: return
        n = len(self.lds_q) - 1 - last
        assert n <= 15, n
        self(f"s_waitcnt lgkmcnt({n})")
        self.lds_q = self.lds_q[last + 1:]
    def wait_ds_all(self):
        self("s_waitcnt lgkmcnt(0)"); self.lds_q = []
    def vm(self, instr, tag=None):
        self(instr); self.vm_q.append(tag)
    def wait_vm(self, *tags):
        last = -1
        for i, t in enumerate(self.vm_q):
            if t in tags: last = i
        if last < 0: return
        n = len(self.vm_q) - 1 - last
        assert n <= 63, n
        self(f"s_waitcnt vmcnt({n})")
        self.vm_q = self.vm_q[last + 1:]
    def wait_vm_all(self):
        self("s_waitcnt vmcnt(0)"); self.vm_q = []
    def text(self): return "\n".join(self.lines) + "\n"

def vr(a, n=1):
    return f"v{a}" if n == 1 else f"v[{a}:{a+n-1}]"
def sr(a, n=1):
    return f"s{a}" if n == 1 else f"s[{a}:{a+n-1}]"

def srd(a, dst, base, nbytes):
    a(f"s_mov_b32 s{dst}, s{base}")
    a(f"s_mov_b32 s{dst+1}, s{base+1}")
    a(f"s_mov_b32 s{dst+2}, {hex(nbytes)}")
    a(f"s_mov_b32 s{dst+3}, 0x20000")

def descriptor(name, vgpr, sgpr=96):
    acc = (vgpr + 3) // 4 * 4
    return f""".amdhsa_kernel {name}
  .amdhsa_next_free_vgpr {vgpr}
  .amdhsa_next_free_sgpr {sgpr}
  .amdhsa_accum_offset {acc}
  .amdhsa_group_segment_fixed_size 0
  .amdhsa_kernarg_size 72
  .amdhsa_user_sgpr_count 2
  .amdhsa_user_sgpr_kernarg_segment_ptr 1
  .amdhsa_system_sgpr_workgroup_id_x 1
.end_amdhsa_kernel
"""

PROF = False
def _prof(): return globals()["PROF"]
PROF_BASE = 0x1800000
def stamp(a, i):
    if not _prof(): return
    a("s_waitcnt lgkmcnt(0)")
    a(f"s_memtime s[{64+2*i}:{65+2*i}]")
    if i == 0: a("s_memrealtime s[76:77]")
    a("s_waitcnt lgkmcnt(0)")
def stamp_store(a, kidx, srdreg, wavereg, n, vtmp=2):
    if not _prof(): return
    a("s_waitcnt vmcnt(0)")
    a(f"s_memtime s[{64+2*n}:{65+2*n}]")
    a("s_memrealtime s[78:79]")
    a("s_waitcnt lgkmcnt(0)")
    a(f"s_lshl_b32 s80, s2, 3")
    a(f"s_add_u32 s80, s80, s{wavereg}")
    a(f"s_lshl_b32 s80, s80, 6")
    a(f"s_add_u32 s80, s80, {PROF_BASE + kidx * 0x40000}")
    a("s_mov_b64 exec, 1")
    for k in range(0, 16, 4):
        for r in range(4): a(f"v_mov_b32 v{vtmp+r}, s{64+k+r}")
        a(f"v_mov_b32 v{vtmp+4}, 0")
        a(f"buffer_store_dwordx4 v[{vtmp}:{vtmp+3}], v{vtmp+4}, s[{srdreg}:{srdreg+3}], s80 offen offset:{4*k}")
        a("s_nop 1")
```

```python
from asmlib import *
import asmlib, os
EXP = os.environ.get('K1EXP', '')
from layout import *

NAME = "qkv_kernel"
LA = int(os.environ.get("K1LA", "2"))
XSL = 16384; NX = 3 if LA == 2 else 4
WSL = 14336; NSL = int(os.environ.get('K1NSL', '5'))
XB = 0; WB = NX * XSL
LDS_BYTES = WB + NSL * WSL
sX, sW, sWS = 12, 16, 20
sWV, sTB, sG, sBR = 24, 25, 26, 27
sXS, sWSO, sXL, sWL = 28, 29, 30, 31
sLSL, sRSL, sSTEP = 32, 33, 34
sHD = 35
sT0, sT1, sT2, sT3 = 36, 37, 38, 39
sC0 = 50
sC1 = 52
sEX = 54
vLANE = 0
vXOFF = 1
vWOFF = 2
vXRD = 26
vWRD = 8
vT = 10
vHM = 9
WF = 64
XF = 92
ACC = 128
PD = 5

def acc(T, rq=0, r=0): return ACC + 16 * T + 4 * rq + r
def greg(G): return acc(G >> 3, (G & 7) >> 1)

def dma_w(a):
    a(f"s_mov_b32 m0, s{sWL}")
    a(f"s_add_u32 s{sLSL}, s{sLSL}, 1")
    a.vm(f"buffer_load_dwordx4 v{vWOFF}, s[{sW}:{sW+3}], s{sWSO} offen lds", "dma")
    a(f"s_add_u32 m0, s{sWL}, 4096")
    a(f"s_cmp_eq_u32 s{sLSL}, {NSL}")
    a.vm(f"buffer_load_dwordx4 v{vWOFF+1}, s[{sW}:{sW+3}], s{sWSO} offen lds", "dma")
    a(f"s_add_u32 m0, s{sWL}, 8192")
    a(f"s_cmp_eq_u32 s{sLSL}, {NSL}")
    a.vm(f"buffer_load_dwordx4 v{vWOFF+2}, s[{sW}:{sW+3}], s{sWSO} offen lds", "dma")
    a(f"s_cselect_b32 s{sT1}, s59, s58")
    a(f"s_cselect_b32 s{sLSL}, 0, s{sLSL}")
    a(f"s_add_u32 m0, s{sWL}, s{sHD}")
    a(f"s_mov_b32 exec_hi, 0")
    a.vm(f"buffer_load_dwordx4 v{vWOFF+3}, s[{sW}:{sW+3}], s{sWSO} offen lds", "dma")
    a(f"s_mov_b32 exec_hi, -1")
    a(f"s_add_u32 s{sWL}, s{sWL}, s{sT1}")
    a(f"""s_add_u32 s{sWSO}, s{sWSO}, {32*3456}
    s_add_u32 s61, s61, 1
    s_cmp_eq_u32 s61, 18
    s_cselect_b32 s{sT1}, {18*32*3456}, 0
    s_cselect_b32 s61, 0, s61
    s_sub_u32 s{sWSO}, s{sWSO}, s{sT1}""")
def dma_x(a, part):
    a(f"s_add_u32 m0, s{sXL}, {part*8192}")
    a(f"s_add_u32 s{sT0}, s{sXS}, {part*64*1152}")
    a.vm(f"buffer_load_dwordx4 v{vXOFF}, s[{sX}:{sX+3}], s{sT0} offen lds", "dma")
    a(f"s_add_u32 m0, s{sXL}, {part*8192 + 4096}")
    a(f"s_add_u32 s{sT0}, s{sXS}, {part*64*1152 + 32*1152}")
    a.vm(f"buffer_load_dwordx4 v{vXOFF}, s[{sX}:{sX+3}], s{sT0} offen lds", "dma")
    if part == 1:
        a(f"""s_add_u32 s62, s62, 1
        s_cmp_eq_u32 s62, {NX}
        s_cselect_b32 s{sT0}, s57, s56
        s_cselect_b32 s62, 0, s62
        s_add_u32 s{sXL}, s{sXL}, s{sT0}
        s_add_u32 s{sXS}, s{sXS}, 128
        s_add_u32 s63, s63, 1
        s_cmp_eq_u32 s63, 9
        s_cselect_b32 s{sT0}, {9*128}, 0
        s_cselect_b32 s63, 0, s63
        s_sub_u32 s{sXS}, s{sXS}, s{sT0}""")

def read_w(a, i):
    if "nord" in EXP: return
    ts, T = divmod(i, 7)
    b = WF + 4 * (i % 7)
    for u in range(2):
        off = ts * 16 * 448 + u * 4 * 448 + T * 64
        a.ds(f"ds_read_b64_tr_b16 v[{b+2*u}:{b+2*u+1}], v{vWRD} offset:{off}", f"W{i%7}")
def read_x(a, ts, par):
    b = XF + 4 * ts
    a.ds(f"ds_read_b128 v[{b}:{b+3}], v{vXRD+2*par+ts}", f"X{ts}")

def pack_part(a, Gb, tmp):
    C = [tmp, tmp + 4, tmp + 8, tmp + 12]
    P2, P4, P6 = tmp + 16, tmp + 18, tmp + 20
    X0, X1 = tmp + 22, tmp + 23
    dst = {0: C[0], 1: C[0] + 2, 3: C[1], 5: C[2], 7: C[3], 8: C[3] + 2, 2: P2, 4: P4, 6: P6}
    for pi in range(9):
        s = greg(Gb + 2 * pi)
        a(f"v_cvt_pk_bf16_f32 v{dst[pi]}, v{s}, v{s+1}")
        a(f"v_cvt_pk_bf16_f32 v{dst[pi]+1}, v{s+2}, v{s+3}")
    for k in range(2):
        a(f"v_bfi_b32 v{C[1]+2+k}, v{vHM}, v{P2+k}, v{P4+k}")
        a(f"v_bfi_b32 v{C[2]+2+k}, v{vHM}, v{P4+k}, v{P6+k}")
    a(f"v_bfi_b32 v{X0}, v{vHM}, v{P6}, v{P2}")
    a(f"v_bfi_b32 v{X1}, v{vHM}, v{P6+1}, v{P2+1}")
    return C, X0, X1

def store_q(a, base_ws, C, X0, X1):
    vm, vx = vT, vT + 1
    a(f"v_lshlrev_b32 v{vm}, 4, v{vLANE}")
    a(f"v_and_b32 v{vx}, 31, v{vLANE}")
    a(f"v_lshlrev_b32 v{vx}, 2, v{vx}")
    a(f"v_and_b32 v{vT+2}, {2*QHS}, v{vHM}")
    a(f"v_add_u32 v{vx}, v{vx}, v{vT+2}")
    a(f"s_lshl_b32 s{sT0}, s{sG}, 8")
    a(f"s_lshl_b32 s{sT1}, s{sTB}, 2")
    a(f"s_add_u32 s{sT0}, s{sT0}, s{sT1}")
    a(f"s_add_u32 s{sT0}, s{sT0}, s{sWV}")
    a(f"s_mul_i32 s{sT0}, s{sT0}, {QT}")
    a(f"s_add_u32 s{sT0}, s{sT0}, {base_ws}")
    for j in range(4):
        a.vm(f"buffer_store_dwordx4 v[{C[j]}:{C[j]+3}], v{vm}, s[{sWS}:{sWS+3}], s{sT0} offen")
        if j == 0: a.vm(f"buffer_store_dword v{X0}, v{vx}, s[{sWS}:{sWS+3}], s{sT0} offen offset:1024")
        if j == 1: a.vm(f"buffer_store_dword v{X1}, v{vx}, s[{sWS}:{sWS+3}], s{sT0} offen offset:1024")
        if j < 3: a(f"s_add_u32 s{sT0}, s{sT0}, {QHS}")

def phi(a, regs):
    tmp = [vT + 8, vT + 10, vT + 12, vT + 14]
    n = len(regs)
    for b in range(0, n, 4):
        grp = regs[b:b + 4]
        for k, r in enumerate(grp):
            a(f"v_pk_mul_f32 v[{tmp[k]}:{tmp[k]+1}], v[{r}:{r+1}], s[{sC0}:{sC0+1}]")
        for k, r in enumerate(grp):
            a(f"v_exp_f32_e64 v{tmp[k]}, v{tmp[k]} clamp")
            a(f"v_exp_f32_e64 v{tmp[k]+1}, v{tmp[k]+1} clamp")
        for k, r in enumerate(grp):
            a(f"v_max_f32 v{r}, 0, v{r}")
            a(f"v_max_f32 v{r+1}, 0, v{r+1}")
        for k, r in enumerate(grp):
            a(f"v_pk_add_f32 v[{r}:{r+1}], v[{r}:{r+1}], v[{tmp[k]}:{tmp[k]+1}]")
        for k, r in enumerate(grp):
            a(f"v_pk_add_f32 v[{r}:{r+1}], v[{r}:{r+1}], s[{sC1}:{sC1+1}]")

ROT = int(os.environ.get("K1ROT", "1"))
def gen():
    a = Asm()
    a(f".globl {NAME}\n.p2align 8\n.type {NAME},@function")
    a.label(NAME)
    a("s_cmp_ge_u32 s2, 256")
    a("s_cbranch_scc1 K1_END")
    stamp(a, 0)
    a("s_load_dwordx4 s[40:43], s[0:1], 0")
    a("s_load_dwordx4 s[44:47], s[0:1], 24")
    a("s_load_dwordx2 s[8:9], s[0:1], 64")
    a(f"""v_lshrrev_b32 v1, 6, v0
    s_and_b32 s{sT0}, s2, 7
    v_and_b32 v0, 63, v0
    v_readfirstlane_b32 s{sWV}, v1
    s_lshr_b32 s{sT1}, s2, 3
    s_lshr_b32 s{sBR}, s{sT0}, 2
    s_and_b32 s{sT2}, s{sT0}, 1
    s_lshl_b32 s{sT2}, s{sT2}, 3
    s_and_b32 s{sT3}, s{sT1}, 7
    s_add_u32 s{sTB}, s{sT2}, s{sT3}
    s_bfe_u32 s{sT2}, s{sT0}, 0x10001
    s_lshl_b32 s{sT2}, s{sT2}, 2
    s_lshr_b32 s60, s{sT1}, 3
    s_add_u32 s{sG}, s{sT2}, s60
    s_cmp_ge_u32 s{sWV}, 4
    s_cbranch_scc0 K1_COMPUTE""")
    t = vT
    a(f"s_sub_u32 s{sWV}, s{sWV}, 4")
    if ROT:
        a(f"""s_lshl_b32 s60, s60, 1
        s_add_u32 s63, s{sT3}, s60
        s_cmp_ge_u32 s63, 9
        s_cselect_b32 s60, 9, 0
        s_sub_u32 s63, s63, s60""")
    else:
        a("s_mov_b32 s63, 0")
    a(f"s_lshl_b32 s61, s63, 1")
    a(f"""v_lshrrev_b32 v{t}, 3, v0
    v_and_b32 v{t+1}, 7, v0
    v_bfe_u32 v{t+2}, v0, 4, 2
    s_and_b32 s60, s{sWV}, 1
    s_lshl_b32 s60, s60, 2
    v_or_b32 v{t+2}, s60, v{t+2}
    v_xor_b32 v{t+1}, v{t+1}, v{t+2}
    v_lshlrev_b32 v{t+1}, 4, v{t+1}
    v_mul_u32_u24 v{t}, 1152, v{t}
    v_add_u32 v{vXOFF}, v{t}, v{t+1}""")
    for m in range(4):
        if m < 3:
            a(f"s_lshl_b32 s{sT0}, s{sWV}, 6")
            if m: a(f"s_add_u32 s{sT0}, s{sT0}, {256*m}")
        else:
            a(f"s_lshl_b32 s{sT0}, s{sWV}, 5")
            a(f"s_add_u32 s{sT0}, s{sT0}, 768")
        a(f"""v_add_u32 v{t}, s{sT0}, v0
        v_mul_u32_u24 v{t+1}, 2341, v{t}
        v_lshrrev_b32 v{t+1}, 16, v{t+1}
        v_mul_u32_u24 v{t+2}, 28, v{t+1}
        v_sub_u32 v{t+2}, v{t}, v{t+2}
        v_min_u32 v{t+2}, 26, v{t+2}
        v_mul_u32_u24 v{t+3}, 57, v{t+2}
        v_lshrrev_b32 v{t+3}, 9, v{t+3}
        v_mul_u32_u24 v{t+1}, 3456, v{t+1}
        v_mul_u32_u24 v{t+3}, 1008, v{t+3}
        v_lshlrev_b32 v{t+2}, 4, v{t+2}
        v_add3_u32 v{vWOFF+m}, v{t+1}, v{t+2}, v{t+3}""")
    a("s_waitcnt lgkmcnt(0)")
    a(f"""s_cmp_eq_u32 s{sBR}, 0
    s_cselect_b32 s4, s40, s44
    s_cselect_b32 s5, s41, s45
    s_cselect_b32 s6, s42, s46
    s_cselect_b32 s7, s43, s47""")
    srd(a, sX, 4, X_BYTES); srd(a, sW, 6, W_BYTES)
    a(f"""s_mul_i32 s{sXS}, s{sTB}, {128*1152}
    s_mul_i32 s{sT0}, s{sWV}, {8*1152}
    s_add_u32 s{sXS}, s{sXS}, s{sT0}
    s_lshl_b32 s{sT0}, s63, 7
    s_add_u32 s{sXS}, s{sXS}, s{sT0}
    s_mul_i32 s{sWSO}, s{sG}, 144
    s_mul_i32 s{sT0}, s61, {32*3456}
    s_add_u32 s{sWSO}, s{sWSO}, s{sT0}
    s_lshl_b32 s{sXL}, s{sWV}, 10
    s_add_u32 s{sWL}, s{sXL}, {WB}
    s_lshl_b32 s{sT0}, s{sWV}, 9
    s_sub_u32 s{sHD}, 12288, s{sT0}
    s_mov_b32 s{sLSL}, 0
    s_mov_b32 s62, 0
    s_mov_b32 s56, {XSL}
    s_mov_b32 s57, {-(NX-1)*XSL & 0xffffffff}
    s_mov_b32 s58, {WSL}
    s_mov_b32 s59, {-(NSL-1)*WSL & 0xffffffff}""")
    def xs(i):
        k = i + 2 * LA - 1 if LA == 3 else i + 3
        if LA == 2: k = i + 3 - 0
        return (k // 2, k % 2)
    nod = "nodma" in EXP
    first = []
    if LA == 2:
        order = [("x", 0, 0), ("x", 0, 1), ("w", 0), ("w", 1), ("x", 1, 0)]
        pro_after_first = 4 + 2
    else:
        order = [("x", 0, 0), ("x", 0, 1), ("w", 0), ("w", 1), ("x", 1, 0), ("x", 1, 1), ("w", 2), ("x", 2, 0)]
    if not nod:
        for o in order:
            if o[0] == "x": dma_x(a, o[2])
            else: dma_w(a)
    a(f"s_mov_b32 s{sSTEP}, 0")
    def slot_ops(i):
        k = (i + 3) if LA == 2 else (i + 5)
        w = i + LA
        return (k if k < 18 else None, w if w < 18 else None)
    n0 = 6 if LA == 2 else 12
    a(f"s_waitcnt vmcnt({n0})")
    a("s_barrier")
    def slot(i, dyn=False):
        k, w = slot_ops(i)
        n = 0
        if w is not None:
            if not nod: dma_w(a)
        if k is not None:
            if not nod: dma_x(a, k % 2)
    def allowed(i):
        n = 0
        for q in range(i - LA + 1, i):
            k, w = slot_ops(q)
            n += (4 if w is not None else 0) + (2 if k is not None else 0)
        return n
    last_full = max(i for i in range(17) if all(x is not None for x in slot_ops(i)))
    NP = (last_full + 1) // 2
    a.label("K1_LLOOP")
    for h in range(2):
        slot(h)
        a(f"s_waitcnt vmcnt({6*(LA-1)})")
        a("s_barrier")
    a(f"s_add_u32 s{sSTEP}, s{sSTEP}, 1")
    a(f"s_cmp_lt_u32 s{sSTEP}, {NP}")
    a("s_cbranch_scc1 K1_LLOOP")
    for i in range(2 * NP, 17):
        slot(i)
        a(f"s_waitcnt vmcnt({allowed(i+1)})")
        a("s_barrier")
    a("s_endpgm")
    a.label("K1_COMPUTE")
    a(f"""v_and_b32 v{t}, 31, v0
    v_lshrrev_b32 v{t+1}, 5, v0
    v_bfe_u32 v{t+2}, v0, 1, 3
    v_xor_b32 v{t+2}, v{t+1}, v{t+2}
    v_lshlrev_b32 v{t+2}, 4, v{t+2}
    v_lshlrev_b32 v{t}, 7, v{t}
    s_lshl_b32 s{sT0}, s{sWV}, 12
    v_add3_u32 v{vXRD}, v{t}, v{t+2}, s{sT0}
    v_xor_b32 v{vXRD+1}, 32, v{vXRD}
    v_xor_b32 v{vXRD+2}, 64, v{vXRD}
    v_xor_b32 v{vXRD+3}, 0x60, v{vXRD}
    v_lshlrev_b32 v{t+1}, 3, v{t+1}
    v_bfe_u32 v{t+2}, v0, 2, 2
    v_add_u32 v{t+1}, v{t+1}, v{t+2}
    v_mul_u32_u24 v{t+1}, 448, v{t+1}
    v_bfe_u32 v{t+2}, v0, 4, 1
    v_lshlrev_b32 v{t+2}, 5, v{t+2}
    v_and_b32 v{t+3}, 3, v0
    v_lshlrev_b32 v{t+3}, 3, v{t+3}
    v_add3_u32 v{vWRD}, v{t+1}, v{t+2}, v{t+3}
    v_add_u32 v{vWRD}, {WB}, v{vWRD}
    v_lshrrev_b32 v{vHM}, 5, v0
    v_sub_u32 v{vHM}, 0, v{vHM}""")
    for r in range(ACC, ACC + 112): a(f"v_mov_b32 v{r}, 0")
    a(f"""s_mov_b32 s56, {XSL}
    s_mov_b32 s57, {-(NX-1)*XSL & 0xffffffff}
    s_mov_b32 s58, {WSL}
    s_mov_b32 s59, {-(NSL-1)*WSL & 0xffffffff}
    s_mov_b32 s{sRSL}, 0
    s_mov_b32 s62, 0
    s_mov_b32 s{sSTEP}, 0""")
    a("s_waitcnt lgkmcnt(0)")
    srd(a, sWS, 8, WS_BYTES)
    a("s_barrier")
    stamp(a, 1)
    read_x(a, 0, 0)
    for i in range(PD): read_w(a, i)
    entry_q = list(a.lds_q)
    a(".p2align 6")
    a.label("K1_LOOP")
    for par in range(2):
        for i in range(14):
            ts, T = divmod(i, 7)
            tags = [f"W{i%7}"]
            if T == 0: tags.append(f"X{ts}")
            a.wait_ds(*tags)
            b = WF + 4 * (i % 7)
            if "nomfma" not in EXP: a(f"v_mfma_f32_32x32x16_bf16 v[{acc(T)}:{acc(T)+15}], v[{b}:{b+3}], v[{XF+4*ts}:{XF+4*ts+3}], v[{acc(T)}:{acc(T)+15}]")
            if i == 1: read_x(a, 1, par)
            if i == 9:
                a(f"s_add_u32 s{sRSL}, s{sRSL}, 1")
                a(f"s_cmp_eq_u32 s{sRSL}, {NSL}")
                a(f"s_cselect_b32 s{sT3}, s59, s58")
                a(f"s_cselect_b32 s{sRSL}, 0, s{sRSL}")
                a(f"v_add_u32 v{vWRD}, s{sT3}, v{vWRD}")
                if par == 1:
                    a(f"s_add_u32 s62, s62, 1")
                    a(f"s_cmp_eq_u32 s62, {NX}")
                    a(f"s_cselect_b32 s{sT2}, s57, s56")
                    a(f"s_cselect_b32 s62, 0, s62")
                    for k in range(4): a(f"v_add_u32 v{vXRD+k}, s{sT2}, v{vXRD+k}")
                    a(f"s_cmp_eq_u32 s{sSTEP}, 8")
                    a("s_cbranch_scc1 K1_NOBAR")
                    a("s_barrier")
                    a.label("K1_NOBAR")
                else:
                    a("s_barrier")
                read_x(a, 0, 1 - par)
            read_w(a, (i + PD) % 14)
    a(f"s_add_u32 s{sSTEP}, s{sSTEP}, 1")
    a(f"s_cmp_lt_u32 s{sSTEP}, 9")
    a("s_cbranch_scc1 K1_LOOP")
    assert a.lds_q == entry_q or "nord" in EXP, (a.lds_q, entry_q)
    a.label("K1_EPI")
    a.wait_ds_all()
    a.vm_q = []
    a("s_barrier")
    stamp(a, 2)
    a("s_nop 7")
    a(f"s_cmp_eq_u32 s{sBR}, 0")
    a("s_cbranch_scc0 K1_EPI_B")
    a(f"s_mov_b32 s{sC0}, {hex(f32bits(QSCALE))}")
    a(f"s_mov_b32 s{sC0+1}, {hex(f32bits(QSCALE))}")
    TMP = 32
    PV = 152
    vW, vR = vT + 2, vT + 3
    a(f"""s_mul_i32 s{sT0}, s{sWV}, {32*PV}
    v_and_b32 v{vW}, 31, v0
    v_mul_u32_u24 v{vW}, {PV}, v{vW}
    v_and_b32 v{vT+4}, 8, v{vHM}
    v_add3_u32 v{vW}, v{vW}, v{vT+4}, s{sT0}
    v_lshrrev_b32 v{vT+4}, 4, v0
    v_lshlrev_b32 v{vT+4}, 3, v{vT+4}
    v_bfe_u32 v{vT+5}, v0, 2, 2
    v_add_u32 v{vT+4}, v{vT+4}, v{vT+5}
    v_mul_u32_u24 v{vT+4}, {PV}, v{vT+4}
    v_and_b32 v{vT+5}, 3, v0
    v_lshlrev_b32 v{vT+5}, 3, v{vT+5}
    v_add3_u32 v{vR}, v{vT+4}, v{vT+5}, s{sT0}""")
    for pi in range(9):
        s = greg(36 + 2 * pi)
        d = TMP + 2 * pi
        a(f"v_cvt_pk_bf16_f32 v{d}, v{s}, v{s+1}")
        a(f"v_cvt_pk_bf16_f32 v{d+1}, v{s+2}, v{s+3}")
        a.ds(f"ds_write_b64 v{vW}, v[{d}:{d+1}] offset:{16*pi}", "vw")
    VT = 96
    for sg in range(5):
        for u in range(2):
            a.ds(f"ds_read_b64_tr_b16 v[{VT+4*sg+2*u}:{VT+4*sg+2*u+1}], v{vR} offset:{u*4*PV + sg*32}", f"vt{sg}")
    for G in range(0, 18, 2):
        s = greg(G)
        a(f"v_pk_mul_f32 v[{s}:{s+1}], v[{s}:{s+1}], s[{sC0}:{sC0+1}]")
        a(f"v_pk_mul_f32 v[{s+2}:{s+3}], v[{s+2}:{s+3}], s[{sC0}:{sC0+1}]")
    stamp(a, 3)
    C, X0, X1 = pack_part(a, 0, TMP)
    store_q(a, WS_QA, C, X0, X1)
    C, X0, X1 = pack_part(a, 18, 64)
    vm, vx = vT, vT + 1
    a(f"""v_and_b32 v{vx}, 31, v0
    v_lshlrev_b32 v{vx}, 2, v{vx}
    v_and_b32 v{vT+6}, {2*HS}, v{vHM}
    v_add_u32 v{vx}, v{vx}, v{vT+6}
    s_mul_i32 s{sT0}, s{sG}, {4*HS}
    s_lshr_b32 s{sT1}, s{sTB}, 2
    s_mul_i32 s{sT1}, s{sT1}, {CH}
    s_add_u32 s{sT3}, s{sT0}, s{sT1}
    s_and_b32 s{sT1}, s{sTB}, 3
    s_lshl_b32 s{sT1}, s{sT1}, 2
    s_add_u32 s{sT1}, s{sT1}, s{sWV}
    s_lshl_b32 s{sT2}, s{sT1}, 10
    s_add_u32 s{sT0}, s{sT3}, s{sT2}
    s_lshl_b32 s{sT2}, s{sT1}, 7
    s_add_u32 s{sT2}, s{sT2}, s{sT3}
    s_add_u32 s{sT2}, s{sT2}, {KX_OFF}""")
    if WS_KV: raise NotImplementedError
    for j in range(4):
        a.vm(f"buffer_store_dwordx4 v[{C[j]}:{C[j]+3}], v{vm}, s[{sWS}:{sWS+3}], s{sT0} offen")
        if j == 0: a.vm(f"buffer_store_dword v{X0}, v{vx}, s[{sWS}:{sWS+3}], s{sT2} offen")
        if j == 1: a.vm(f"buffer_store_dword v{X1}, v{vx}, s[{sWS}:{sWS+3}], s{sT2} offen")
        if j < 3: a(f"s_add_u32 s{sT0}, s{sT0}, {HS}")
        if j == 0: a(f"s_add_u32 s{sT2}, s{sT2}, {HS}")
    a(f"""s_and_b32 s{sT1}, s{sTB}, 3
    s_lshl_b32 s{sT1}, s{sT1}, 3
    s_mul_i32 s{sT2}, s{sT1}, {VB}
    s_add_u32 s{sT3}, s{sT3}, s{sT2}
    s_add_u32 s{sT3}, s{sT3}, {V_OFF}
    s_mul_i32 s{sT2}, s{sWV}, {2*VB}
    s_add_u32 s{sT0}, s{sT3}, s{sT2}
    v_lshrrev_b32 v{vT+6}, 5, v0
    v_mul_u32_u24 v{vT+6}, {VB}, v{vT+6}
    v_bfe_u32 v{vT+7}, v0, 4, 1
    v_mul_u32_u24 v{vT+7}, 304, v{vT+7}
    v_add_u32 v{vT+6}, v{vT+6}, v{vT+7}
    v_and_b32 v{vT+7}, 15, v0
    s_mov_b32 s{sT1}, {HS-288}""")
    for sg in range(5):
        g0 = vT + 8 + 2 * (sg & 1)
        a(f"""v_add_u32 v{g0}, {16*sg}, v{vT+7}
        v_mul_u32_u24 v{g0+1}, 57, v{g0}
        v_lshrrev_b32 v{g0+1}, 10, v{g0+1}
        v_mul_lo_u32 v{g0+1}, v{g0+1}, s{sT1}
        v_lshlrev_b32 v{g0}, 4, v{g0}
        v_add3_u32 v{g0}, v{g0}, v{g0+1}, v{vT+6}""")
        if sg == 4:
            a(f"v_bfe_u32 v{g0+1}, v0, 3, 1")
            a(f"v_lshlrev_b32 v{g0+1}, 31, v{g0+1}")
            a(f"v_or_b32 v{g0}, v{g0}, v{g0+1}")
        a.wait_ds(f"vt{sg}")
        a.vm(f"buffer_store_dwordx4 v[{VT+4*sg}:{VT+4*sg+3}], v{g0}, s[{sWS}:{sWS+3}], s{sT0} offen")
    stamp(a, 4)
    a(f"s_cmp_eq_u32 s{sWV}, 0")
    a("s_cbranch_scc0 K1_FIN")
    a(f"""v_lshrrev_b32 v{vT+8}, 4, v0
    s_mov_b32 s{sT1}, {HS}
    v_mul_lo_u32 v{vT+8}, v{vT+8}, s{sT1}
    v_bfe_u32 v{vT+9}, v0, 1, 3
    v_mul_u32_u24 v{vT+9}, {VB}, v{vT+9}
    v_and_b32 v{vT+10}, 1, v0
    v_mul_u32_u24 v{vT+10}, 304, v{vT+10}
    v_add3_u32 v{vT+8}, v{vT+8}, v{vT+9}, v{vT+10}
    v_mov_b32 v32, 0x3f803f80
    v_mov_b32 v33, 0x3f803f80
    v_mov_b32 v34, 0x3f803f80
    v_mov_b32 v35, 0x3f803f80
    buffer_store_dwordx4 v[32:35], v{vT+8}, s[{sWS}:{sWS+3}], s{sT3} offen offset:288
    s_branch K1_FIN""")
    a.label("K1_EPI_B")
    a.lds_q = []; a.vm_q = []
    a(f"s_mov_b32 s{sC0}, {hex(f32bits(LOG2E))}")
    a(f"s_mov_b32 s{sC0+1}, {hex(f32bits(LOG2E))}")
    a(f"s_mov_b32 s{sC1}, {hex(f32bits(1e-6))}")
    a(f"s_mov_b32 s{sC1+1}, {hex(f32bits(1e-6))}")
    PB = 296
    vW = vT + 2
    a(f"""s_lshl_b32 s{sT0}, s{sWV}, 5
    v_and_b32 v{vW}, 31, v0
    v_add_u32 v{vW}, s{sT0}, v{vW}
    v_mul_u32_u24 v{vW}, {PB}, v{vW}
    v_mov_b32 v{vT+4}, 0x3f803f80
    v_mov_b32 v{vT+5}, 0x3f803f80""")
    a.ds(f"ds_write_b64 v{vW}, v[{vT+4}:{vT+5}] offset:288", "st")
    a(f"v_and_b32 v{vT+6}, 8, v{vHM}")
    a(f"v_add_u32 v{vW}, v{vW}, v{vT+6}")
    for pi in range(9):
        s = greg(36 + 2 * pi)
        d = 32 + 2 * pi
        a(f"v_cvt_pk_bf16_f32 v{d}, v{s}, v{s+1}")
        a(f"v_cvt_pk_bf16_f32 v{d+1}, v{s+2}, v{s+3}")
        a.ds(f"ds_write_b64 v{vW}, v[{d}:{d+1}] offset:{16*(9+pi)}", "st")
    kregs = []
    for G in range(18, 36, 2): kregs += [greg(G), greg(G) + 2]
    phi(a, kregs)
    for pi in range(9):
        s = greg(18 + 2 * pi)
        d = 64 + 2 * pi
        a(f"v_cvt_pk_bf16_f32 v{d}, v{s}, v{s+1}")
        a(f"v_cvt_pk_bf16_f32 v{d+1}, v{s+2}, v{s+3}")
        a.ds(f"ds_write_b64 v{vW}, v[{d}:{d+1}] offset:{16*pi}", "st")
    a.wait_ds_all()
    stamp(a, 3)
    a("s_barrier")
    vA, vB = vT + 3, vT + 4
    a(f"""s_mul_i32 s{sT0}, s{sWV}, 18
    s_lshr_b32 s{sT0}, s{sT0}, 2
    v_lshrrev_b32 v{vT+5}, 5, v0
    v_lshlrev_b32 v{vT+5}, 3, v{vT+5}
    v_bfe_u32 v{vT+6}, v0, 2, 2
    v_add_u32 v{vT+5}, v{vT+5}, v{vT+6}
    v_mul_u32_u24 v{vT+5}, {PB}, v{vT+5}
    v_bfe_u32 v{vT+6}, v0, 4, 1
    v_lshlrev_b32 v{vT+6}, 2, v{vT+6}
    v_and_b32 v{vT+7}, 3, v0
    v_add_u32 v{vT+6}, v{vT+6}, v{vT+7}
    v_add_u32 v{vT+7}, s{sT0}, v{vT+6}
    v_lshl_add_u32 v{vA}, v{vT+7}, 3, v{vT+5}
    v_add_u32 v{vT+7}, 18, v{vT+7}
    v_cmp_eq_u32 vcc, 5, v{vT+6}
    v_mov_b32 v{vT+8}, 36
    s_nop 0
    v_cndmask_b32 v{vT+7}, v{vT+7}, v{vT+8}, vcc
    v_lshl_add_u32 v{vB}, v{vT+7}, 3, v{vT+5}""")
    KA, KBr, KD = 96, 104, 112
    def rd(tau):
        for u in range(2):
            off = tau * 16 * PB + u * 4 * PB
            a.ds(f"ds_read_b64_tr_b16 v[{KA+4*(tau&1)+2*u}:{KA+4*(tau&1)+2*u+1}], v{vA} offset:{off}", f"kv{tau}")
            a.ds(f"ds_read_b64_tr_b16 v[{KBr+4*(tau&1)+2*u}:{KBr+4*(tau&1)+2*u+1}], v{vB} offset:{off}", f"kv{tau}")
    rd(0); rd(1)
    qregs = []
    for G in range(0, 18, 2): qregs += [greg(G), greg(G) + 2]
    phi(a, qregs)
    for tau in range(8):
        a.wait_ds(f"kv{tau}")
        c = "0" if tau == 0 else f"v[{KD}:{KD+15}]"
        a(f"v_mfma_f32_32x32x16_bf16 v[{KD}:{KD+15}], v[{KA+4*(tau&1)}:{KA+4*(tau&1)+3}], v[{KBr+4*(tau&1)}:{KBr+4*(tau&1)+3}], {c}")
        if tau + 2 < 8: rd(tau + 2)
    stamp(a, 4)
    C, X0, X1 = pack_part(a, 0, 32)
    store_q(a, WS_PQ, C, X0, X1)
    g0 = vT + 4
    a(f"""s_and_b32 s{sT0}, s{sWV}, 1
    s_lshl_b32 s{sT0}, s{sT0}, 1
    v_and_b32 v{g0}, 31, v0
    v_subrev_u32 v{g0+1}, s{sT0}, v{g0}
    v_cmp_gt_u32 vcc, 18, v{g0+1}
    v_mov_b32 v{g0+2}, {INVALID}
    v_mul_u32_u24 v{g0+1}, 80, v{g0+1}
    v_cndmask_b32 v{g0+1}, v{g0+2}, v{g0+1}, vcc
    v_cmp_eq_u32 vcc, 20, v{g0}
    v_mov_b32 v{g0+2}, {18*80}
    s_nop 0
    v_cndmask_b32 v{g0+1}, v{g0+1}, v{g0+2}, vcc
    v_and_b32 v{g0+2}, 16, v{vHM}
    v_add_u32 v{g0+2}, v{g0+1}, v{g0+2}
    v_and_b32 v{g0+3}, {INVALID}, v{vHM}
    v_or_b32 v{g0+3}, v{g0+3}, v{g0+2}
    s_lshl_b32 s{sT0}, s{sG}, 2
    s_add_u32 s{sT0}, s{sT0}, s{sWV}
    s_mul_i32 s{sT0}, s{sT0}, {KVP_H}
    s_mul_i32 s{sT1}, s{sTB}, {KVP_TB}
    s_add_u32 s{sT0}, s{sT0}, s{sT1}
    s_add_u32 s{sT0}, s{sT0}, {WS_KVP}""")
    a(f"buffer_store_dwordx4 v[{KD}:{KD+3}], v{g0+2}, s[{sWS}:{sWS+3}], s{sT0} offen")
    a(f"buffer_store_dwordx4 v[{KD+4}:{KD+7}], v{g0+2}, s[{sWS}:{sWS+3}], s{sT0} offen offset:32")
    a(f"buffer_store_dwordx4 v[{KD+8}:{KD+11}], v{g0+3}, s[{sWS}:{sWS+3}], s{sT0} offen offset:64")
    a.label("K1_FIN")
    stamp_store(a, 0, sWS, sWV, 5)
    a.label("K1_END")
    a("s_endpgm")
    return a.text(), descriptor(NAME, 240), LDS_BYTES
```

```python
from asmlib import *
import os
EXP = os.environ.get('K2EXP', 'oob')
from layout import *

NAME = "attn_kernel"
KVB = 4 * CH
LDS_BYTES = KVB + 2048
sWS = 8
sH, sQB, sWV, sCH = 12, 13, 14, 15
sT0, sT1, sT2, sT3 = 16, 17, 18, 19
sOO, sOX = 20, 21
sTILE = 22
sFLAG = 23
vL16 = 1
vQM = 4
vQX = 8
vIDX = 10
vKA, vKX, vVA = 11, 12, 13
vHM = 14
vT = 100
S = [16, 32]
O = 48
KF = [64, 68]
KX = [72, 74]
V0, V1 = 76, 80
KP = 84
vPM = 120
vPX = 124
NEGM = 128

def qk1(a, dst, kf, c="0"):
    a(f"v_mfma_f32_32x32x16_bf16 v[{dst}:{dst+15}], v[{kf}:{kf+3}], v[{vQM}:{vQM+3}], {c}")
def qk2(a, dst, kx):
    if "noqk2" in EXP: return
    a(f"v_mfma_f32_32x32x8_bf16 v[{dst}:{dst+15}], v[{kx}:{kx+1}], v[{vQX}:{vQX+1}], v[{dst}:{dst+15}]")
def pv(a, vf, p):
    if "nopv" in EXP: return
    a(f"v_smfmac_f32_32x32x32_bf16 v[{O}:{O+15}], v[{vf}:{vf+3}], v[{p}:{p+7}], v{vIDX}")
def exps(a, base, lo, hi):
    if "noexp" in EXP:
        for r in range(lo, hi): a(f"v_nop"); a("v_nop")
        return
    for r in range(lo, hi): a(f"v_exp_f32 v{base+r}, v{base+r}")
def koff(t): return (t // 16) * CH + (t % 16) * 1024
def kxoff(t): return (t // 16) * CH + KX_OFF + (t % 16) * 128
def voff(t, half): return (t // 16) * CH + V_OFF + ((t % 16) * 2 + half) * VB
def rd_k(a, t, buf):
    a.ds(f"ds_read_b128 v[{KF[buf]}:{KF[buf]+3}], v{vKA} offset:{koff(t)}", f"K{buf}")
    a.ds(f"ds_read_b32 v{KX[buf]}, v{vKX} offset:{kxoff(t)}", f"X{buf}")
def rd_v(a, t, half):
    r = V0 if half == 0 else V1
    if "zrow" in EXP: a("s_mov_b64 exec, s[34:35]")
    a.ds(f"ds_read_b128 v[{r}:{r+3}], v{vVA} offset:{voff(t, half)}", f"V{half}")
    if "zrow" in EXP: a("s_mov_b64 exec, -1")

def dma_piece(a, m, tag=None):
    if m < 4:
        a(f"s_add_u32 s40, s37, {m*8192}")
    else:
        a(f"s_mov_b32 s40, s38")
    a(f"s_add_u32 m0, s40, s39")
    a(f"s_add_u32 s40, s40, s36")
    a.vm(f"buffer_load_dwordx4 v{vL16}, s[{sWS}:{sWS+3}], s40 offen lds", tag)
    if m == 4:
        a(f"s_add_u32 s36, s36, {CH}")
        a(f"s_add_u32 s39, s39, {CH}")

def b_loads(a):
    a(f"s_add_u32 s{sT0}, s24, {WS_PQ}")
    a(f"buffer_load_dwordx4 v[{vPM}:{vPM+3}], v{vL16}, s[{sWS}:{sWS+3}], s{sT0} offen")
    a(f"buffer_load_dword v{vPX}, v3, s[{sWS}:{sWS+3}], s{sT0} offen offset:1024")
    a(f"s_mul_i32 s{sT0}, s{sH}, {KVP_H}")
    a(f"s_add_u32 s{sT0}, s{sT0}, {WS_KVP}")
    a(f"v_lshlrev_b32 v{vT+6}, 2, v2")
    a(f"v_cmp_gt_u32 vcc, 380, v2")
    a(f"v_mov_b32 v{vT+7}, {INVALID}")
    a("s_nop 0")
    a(f"v_cndmask_b32 v{vT+6}, v{vT+7}, v{vT+6}, vcc")
    for tb in range(16):
        a(f"buffer_load_dword v{KP+tb}, v{vT+6}, s[{sWS}:{sWS+3}], s{sT0} offen")
        if tb < 15: a(f"s_add_u32 s{sT0}, s{sT0}, {KVP_TB}")

def b_stage(a):
    for k in (8, 4, 2, 1):
        for r in range(k): a(f"v_add_f32 v{KP+r}, v{KP+r}, v{KP+r+k}")
    t = vT + 6
    a(f"""v_mul_u32_u24 v{t}, 3277, v2
    v_lshrrev_b32 v{t}, 16, v{t}
    v_mul_u32_u24 v{t+1}, 20, v{t}
    v_sub_u32 v{t+1}, v2, v{t+1}
    s_and_b32 s{sT0}, s{sH}, 3""")
    tabs = {0: [0, 2, 1, 3, 4], 1: [4, 3, 0, 2, 1], 2: [3, 0, 2, 1, 4], 3: [4, 0, 2, 1, 3]}
    def enc(l): return sum(v << (4 * i) for i, v in enumerate(l))
    a(f"s_mov_b32 s{sT1}, {hex(enc(tabs[0]))}")
    for j in (1, 2, 3):
        a(f"s_cmp_eq_u32 s{sT0}, {j}")
        a(f"s_cselect_b32 s{sT1}, {hex(enc(tabs[j]))}, s{sT1}")
    a(f"""v_and_b32 v{t+2}, 28, v{t+1}
    v_bfe_u32 v{t+2}, s{sT1}, v{t+2}, 4
    v_and_b32 v{t+3}, 3, v{t+1}
    s_and_b32 s{sT2}, s{sT0}, 1
    s_lshl_b32 s{sT2}, s{sT2}, 1
    v_cmp_eq_u32 vcc, 4, v{t+2}
    v_subrev_u32 v{t+4}, s{sT2}, v{t+3}
    s_nop 0
    v_cndmask_b32 v{t+3}, v{t+3}, v{t+4}, vcc
    v_cmp_gt_u32 s[26:27], 2, v{t+4}
    v_lshlrev_b32 v{t+2}, 3, v{t+2}
    v_lshl_add_u32 v{t+2}, v{t+3}, 1, v{t+2}
    v_lshl_add_u32 v{t+2}, v{t}, 6, v{t+2}
    v_add_u32 v{t+2}, {KVB}, v{t+2}
    s_andn2_b64 s[28:29], vcc, s[26:27]
    v_cmp_gt_u32 vcc, 380, v2
    v_cvt_pk_bf16_f32 v{KP}, v{KP}, v{KP}
    s_andn2_b64 s[28:29], vcc, s[28:29]
    s_and_saveexec_b64 s[30:31], s[28:29]
    s_cbranch_execz K2_NOSTG
    ds_write_b16 v{t+2}, v{KP}""")
    a.label("K2_NOSTG")
    a("s_mov_b64 exec, s[30:31]")

def normalize_store(a, src, eps, wsbase):
    t = vT
    if eps: a(f"v_add_f32 v{src+10}, {hex(f32bits(1e-6))}, v{src+10}")
    a(f"v_rcp_f32 v{t}, v{src+10}")
    a("s_nop 0")
    for r in range(0, 10, 2):
        a(f"v_mul_f32 v{src+r}, v{src+r}, v{t}")
        a(f"v_mul_f32 v{src+r+1}, v{src+r+1}, v{t}")
    for k in range(5):
        a(f"v_cvt_pk_bf16_f32 v{t+4+k}, v{src+2*k}, v{src+2*k+1}")
    a(f"s_add_u32 s{sT0}, s{sOO}, {wsbase}")
    a(f"s_add_u32 s{sT1}, s{sOX}, {wsbase}")
    a(f"buffer_store_dwordx4 v[{t+4}:{t+7}], v{t+2}, s[{sWS}:{sWS+3}], s{sT0} offen")
    a(f"buffer_store_dword v{t+8}, v{t+3}, s[{sWS}:{sWS+3}], s{sT1} offen")

def gen():
    a = Asm()
    a(f".globl {NAME}\n.p2align 8\n.type {NAME},@function")
    a.label(NAME)
    a("s_cmp_ge_u32 s2, 256")
    a("s_cbranch_scc1 K2_END")
    stamp(a, 0)
    a("s_load_dwordx2 s[4:5], s[0:1], 64")
    a(f"""s_and_b32 s{sT0}, s2, 7
    s_lshr_b32 s{sT1}, s2, 3
    s_lshl_b32 s{sH}, s{sT0}, 2
    s_lshr_b32 s{sT2}, s{sT1}, 3
    s_add_u32 s{sH}, s{sH}, s{sT2}
    s_and_b32 s{sQB}, s{sT1}, 7
    v_lshrrev_b32 v1, 6, v0
    v_mov_b32 v2, v0
    v_readfirstlane_b32 s{sWV}, v1
    v_and_b32 v0, 63, v0
    v_lshlrev_b32 v{vL16}, 4, v0
    v_and_b32 v3, 31, v0
    v_lshlrev_b32 v3, 2, v3
    s_lshl_b32 s{sTILE}, s{sQB}, 3
    s_add_u32 s{sTILE}, s{sTILE}, s{sWV}
    s_lshl_b32 s{sT0}, s{sH}, 6
    s_add_u32 s{sT0}, s{sT0}, s{sTILE}
    s_mul_i32 s{sT3}, s{sT0}, {QT}
    s_waitcnt lgkmcnt(0)""")
    srd(a, sWS, 4, WS_BYTES)
    a(f"s_mov_b32 s24, s{sT3}")
    a(f"s_add_u32 s{sT0}, s{sT3}, {WS_QA}")
    a.vm(f"buffer_load_dwordx4 v[{vQM}:{vQM+3}], v{vL16}, s[{sWS}:{sWS+3}], s{sT0} offen", "q")
    a.vm(f"buffer_load_dword v{vQX}, v3, s[{sWS}:{sWS+3}], s{sT0} offen offset:1024", "q")
    a(f"s_mul_i32 s36, s{sH}, {HS}")
    a(f"s_lshl_b32 s37, s{sWV}, 10")
    a(f"s_add_u32 s38, s37, {32*1024}")
    a(f"s_min_u32 s38, s38, {36*1024}")
    a(f"s_mov_b32 s39, 0")
    for m in range(5): dma_piece(a, m, "c0")
    a("s_mov_b32 s34, 0x0047ffff")
    a("s_mov_b32 s35, 0x0047ffff")
    t = vT
    a(f"""v_lshrrev_b32 v{vHM}, 5, v0
    v_sub_u32 v{vHM}, 0, v{vHM}
    v_mov_b32 v{vKA}, v{vL16}
    v_mov_b32 v{vKX}, v3
    v_mov_b32 v{vIDX}, 0xdddddddd
    v_mov_b32 v{vQX+1}, 0
    v_mov_b32 v{KX[0]+1}, 0
    v_mov_b32 v{KX[1]+1}, 0""")
    a(f"""v_and_b32 v{t}, 31, v0
    v_mov_b32 v{t+1}, 0
    v_cmp_lt_u32 vcc, 27, v{t}
    v_mov_b32 v{t+2}, 4
    s_nop 0
    v_cndmask_b32 v{t+1}, v{t+1}, v{t+2}, vcc
    v_cmp_gt_u32 vcc, 19, v{t}
    s_nop 1
    v_cndmask_b32 v{t+1}, v{t+1}, v{t}, vcc
    v_mov_b32 v{t+2}, 18
    v_cmp_eq_u32 vcc, 19, v{t}
    s_nop 1
    v_cndmask_b32 v{t+1}, v{t+1}, v{t+2}, vcc
    v_cmp_eq_u32 vcc, 22, v{t}
    s_nop 1
    v_cndmask_b32 v{t+1}, v{t+1}, v{t+2}, vcc
    v_mov_b32 v15, v{t+1}
    v_lshlrev_b32 v{t+1}, 4, v{t+1}
    v_and_b32 v{t+2}, 304, v{vHM}
    v_add_u32 v{vVA}, v{t+1}, v{t+2}""")
    if "oob" in EXP:
        a(f"""v_and_b32 v{t}, 31, v0
        v_lshrrev_b32 v{t+1}, v{t}, s34
        v_and_b32 v{t+1}, 1, v{t+1}
        v_xor_b32 v{t+1}, 1, v{t+1}
        v_lshlrev_b32 v{t+1}, 20, v{t+1}
        v_or_b32 v{vVA}, v{vVA}, v{t+1}""")
    a(f"""v_bfe_u32 v{t}, v0, 4, 1
    v_mul_u32_u24 v{t}, {OT}, v{t}
    v_and_b32 v{t+1}, 15, v0
    v_lshlrev_b32 v{t+1}, 4, v{t+1}
    v_add_u32 v{t}, v{t}, v{t+1}
    v_and_b32 v{t+1}, 256, v{vHM}
    v_add_u32 v{t+2}, v{t}, v{t+1}
    v_and_b32 v{t+1}, {INVALID}, v{vHM}
    v_or_b32 v{t+3}, v{t}, v{t+1}
    s_mul_i32 s{sT0}, s{sTILE}, {2*OT}
    s_lshr_b32 s{sT1}, s{sH}, 1
    s_lshl_b32 s{sT1}, s{sT1}, 10
    s_and_b32 s{sT2}, s{sH}, 1
    s_lshl_b32 s{sT2}, s{sT2}, 9
    s_add_u32 s{sT1}, s{sT1}, s{sT2}
    s_add_u32 s{sOO}, s{sT0}, s{sT1}
    s_lshr_b32 s{sT1}, s{sH}, 4
    s_add_u32 s{sT1}, s{sT1}, 16
    s_lshl_b32 s{sT1}, s{sT1}, 10
    s_bfe_u32 s{sT2}, s{sH}, 0x20002
    s_lshl_b32 s{sT2}, s{sT2}, 8
    s_add_u32 s{sT1}, s{sT1}, s{sT2}
    s_and_b32 s{sT2}, s{sH}, 3
    s_lshl_b32 s{sT2}, s{sT2}, 2
    s_add_u32 s{sT1}, s{sT1}, s{sT2}
    s_add_u32 s{sOX}, s{sT0}, s{sT1}""")
    for r in range(16): a(f"v_mov_b32 v{O+r}, 0")
    for r in range(8, 16): a(f"v_mov_b32 v{S[1]+r}, 0")
    for r in range(4): a(f"v_mov_b32 v{V1+r}, 0")
    for r in range(4): a(f"v_mov_b32 v{V0+r}, 0")

    a(f"s_mov_b32 s{sCH}, 0")
    a.wait_vm_all()
    a(f"v_not_b32 v{t+5}, v{vHM}")
    a(f"v_and_b32 v{vQX}, v{vQX}, v{t+5}")
    a("s_barrier")
    stamp(a, 1)
    rd_k(a, 0, 0); rd_k(a, 1, 1); rd_v(a, 0, 0)
    a.wait_ds("K0", "X0")
    qk1(a, S[0], KF[0]); qk2(a, S[0], KX[0])
    a("s_nop 7"); a("s_nop 7")
    entry_q = list(a.lds_q)
    a(".p2align 6")
    a.label("K2_LOOP")
    for tl in range(16):
        cur, nxt = tl & 1, (tl + 1) & 1
        if tl == 14:
            a(f"s_cmp_eq_u32 s{sCH}, 3")
            a("s_cbranch_scc1 K2_NOBAR")
            a("s_waitcnt vmcnt(0)")
            a(f"s_cmp_eq_u32 s{sCH}, 1")
            a("s_cbranch_scc1 K2_BSTAGE")
            a.label("K2_BAR")
            a("s_barrier")
            a.label("K2_NOBAR")
        if tl < 5:
            a(f"s_cmp_eq_u32 s{sCH}, 3")
            a(f"s_cbranch_scc1 K2_NODMA{tl}")
            dma_piece(a, tl)
            a.label(f"K2_NODMA{tl}")
        if tl == 5:
            a(f"s_cmp_eq_u32 s{sCH}, 1")
            a("s_cbranch_scc1 K2_BLOADS")
            a.label("K2_BLOADED")
        if tl > 0: a.wait_ds("V1")
        elif "V1" in a.lds_q: a.wait_ds("V1")
        pv(a, V1, S[nxt] + 8)
        rd_v(a, tl, 1)
        exps(a, S[cur], 0, 4)
        a.wait_ds(f"K{nxt}", f"X{nxt}")
        qk1(a, S[nxt], KF[nxt])
        exps(a, S[cur], 4, 8)
        qk2(a, S[nxt], KX[nxt])
        rd_k(a, tl + 2, cur)
        exps(a, S[cur], 8, 12)
        a.wait_ds("V0")
        pv(a, V0, S[cur])
        exps(a, S[cur], 12, 16)
        rd_v(a, tl + 1, 0)
        if tl == 15:
            for r in (vKA, vKX, vVA): a(f"v_add_u32 v{r}, {CH}, v{r}")
            a.wait_ds("V1")
            a(f"s_add_u32 s{sCH}, s{sCH}, 1")
            a(f"s_cmp_lt_u32 s{sCH}, 4")
            a("s_cbranch_scc1 K2_LOOP")
    print("k2 entry", entry_q, "exit", a.lds_q)
    a("s_branch K2_FIN")
    a.label("K2_BLOADS")
    b_loads(a)
    a("s_branch K2_BLOADED")
    a.label("K2_BSTAGE")
    b_stage(a)
    a("s_waitcnt lgkmcnt(0)")
    a("s_branch K2_BAR")
    a.label("K2_FIN")
    a.lds_q = []
    a("s_waitcnt lgkmcnt(0)")
    stamp(a, 2)
    pv(a, V1, S[1] + 8)
    t = vT + 6
    a(f"v_lshlrev_b32 v{t}, 6, v15")
    a(f"v_add_u32 v{t}, {KVB}, v{t}")
    a(f"v_and_b32 v{t+1}, 16, v{vHM}")
    a(f"v_add_u32 v{t+1}, v{t}, v{t+1}")
    a(f"ds_read_b128 v[{KF[0]}:{KF[0]+3}], v{t+1}")
    a(f"ds_read_b32 v{KX[0]}, v{t} offset:32")
    a("s_nop 7")
    a(f"v_add_f32_e64 v{t+2}, abs(v{O}), abs(v{O+1})")
    for r in range(2, 10): a(f"v_add_f32_e64 v{t+2}, v{t+2}, abs(v{O+r})")
    a(f"s_mov_b32 s25, {hex(f32bits(2.0**60))}")
    a(f"s_mov_b32 s32, {hex(f32bits(2.0**-60))}")
    a(f"v_cmp_gt_f32 vcc, 0x7f800000, v{t+2}")
    a(f"v_cmp_le_f32 s[26:27], v{O+10}, s25")
    a(f"v_cmp_ge_f32 s[28:29], v{O+10}, s32")
    a("s_nop 3")
    a(f"s_and_b64 vcc, vcc, s[26:27]")
    a(f"s_and_b64 vcc, vcc, s[28:29]")
    a("s_cmp_eq_u64 vcc, exec")
    a("s_cbranch_scc0 K2_SLOW")
    a.label("K2_NORM")
    normalize_store(a, O, False, WS_OA)
    stamp(a, 3)
    a(f"v_mov_b32 v{vPX+1}, 0")
    a(f"v_not_b32 v{vT+10}, v{vHM}")
    a(f"v_and_b32 v{vPX}, v{vPX}, v{vT+10}")
    a("s_waitcnt lgkmcnt(0)")
    a(f"v_mfma_f32_32x32x16_bf16 v[{S[0]}:{S[0]+15}], v[{KF[0]}:{KF[0]+3}], v[{vPM}:{vPM+3}], 0")
    a(f"v_mfma_f32_32x32x8_bf16 v[{S[0]}:{S[0]+15}], v[{KX[0]}:{KX[0]+1}], v[{vPX}:{vPX+1}], v[{S[0]}:{S[0]+15}]")
    a("s_nop 7"); a("s_nop 7")
    normalize_store(a, S[0], True, WS_OB)
    stamp(a, 4)
    stamp_store(a, 1, sWS, sWV, 5)
    a.label("K2_END")
    a("s_endpgm")
    a.label("K2_SLOW")
    a("s_waitcnt lgkmcnt(0)")
    mx = vT + 11
    a(f"v_subrev_u32 v{vKA}, {4*CH}, v{vKA}")
    a(f"v_subrev_u32 v{vKX}, {4*CH}, v{vKX}")
    a(f"v_subrev_u32 v{vVA}, {4*CH}, v{vVA}")
    a(f"v_mov_b32 v{mx}, 0xff800000")
    for pas in range(2):
        a(f"v_mov_b32 v{vT+12}, v{vKA}")
        a(f"v_mov_b32 v{vT+13}, v{vKX}")
        a(f"v_mov_b32 v{vT+14}, v{vVA}")
        a(f"s_mov_b32 s{sCH}, 0")
        if pas == 1:
            for r in range(16): a(f"v_mov_b32 v{O+r}, 0")
        a.label(f"K2_SL{pas}")
        a(f"ds_read_b128 v[{KF[1]}:{KF[1]+3}], v{vT+12}")
        a(f"ds_read_b32 v{KX[1]}, v{vT+13} offset:{KX_OFF}")
        if pas == 1:
            a(f"ds_read_b128 v[{V0}:{V0+3}], v{vT+14} offset:{V_OFF}")
            a(f"ds_read_b128 v[{V1}:{V1+3}], v{vT+14} offset:{V_OFF+VB}")
        a("s_waitcnt lgkmcnt(0)")
        qk1(a, S[0], KF[1], "0" if pas == 0 else f"v[{NEGM}:{NEGM+15}]")
        qk2(a, S[0], KX[1])
        a("s_nop 7"); a("s_nop 7")
        if pas == 0:
            for r in range(0, 16, 2): a(f"v_max3_f32 v{mx}, v{mx}, v{S[0]+r}, v{S[0]+r+1}")
        else:
            exps(a, S[0], 0, 16)
            a("s_nop 1")
            pv(a, V0, S[0]); pv(a, V1, S[0] + 8)
        a(f"s_add_u32 s{sCH}, s{sCH}, 1")
        a(f"s_and_b32 s{sT0}, s{sCH}, 15")
        a(f"s_cmp_eq_u32 s{sT0}, 0")
        a(f"s_mov_b32 s{sT1}, 1024")
        a(f"s_mov_b32 s{sT2}, 128")
        a(f"s_mov_b32 s{sT3}, {2*VB}")
        a(f"s_cbranch_scc0 K2_SLA{pas}")
        a(f"s_mov_b32 s{sT1}, {CH - 15*1024}")
        a(f"s_mov_b32 s{sT2}, {CH - 15*128}")
        a(f"s_mov_b32 s{sT3}, {CH - 15*2*VB}")
        a.label(f"K2_SLA{pas}")
        a(f"v_add_u32 v{vT+12}, s{sT1}, v{vT+12}")
        a(f"v_add_u32 v{vT+13}, s{sT2}, v{vT+13}")
        a(f"v_add_u32 v{vT+14}, s{sT3}, v{vT+14}")
        a(f"s_cmp_lt_u32 s{sCH}, 64")
        a(f"s_cbranch_scc1 K2_SL{pas}")
        if pas == 0:
            a(f"v_mov_b32 v{vT+15}, v{mx}")
            a("s_nop 1")
            a(f"v_permlane32_swap_b32 v{mx}, v{vT+15}")
            a("s_nop 1")
            a(f"v_max_f32 v{mx}, v{mx}, v{vT+15}")
            for r in range(16): a(f"v_sub_f32 v{NEGM+r}, 0, v{mx}")
    a("s_nop 7"); a("s_nop 7")
    a("s_branch K2_NORM")
    return a.text(), descriptor(NAME, 144), LDS_BYTES
```

```python
from asmlib import *
from layout import *
import os

NAME = "oproj_kernel"
WROW = 160
OSL = 16384
WSL = 64 * WROW
SLOT = OSL + WSL
NSL = 4
LA = 2
STG = NSL * SLOT
SP = 176
LDS_BYTES = STG + 4 * 32 * SP + 1024
ROT = int(os.environ.get("K3ROT", "1"))
sO, sW, sOUT = 8, 12, 16
sWV, sTB, sCB, sBR = 20, 21, 22, 23
sT0, sT1, sT2, sT3 = 24, 25, 26, 27
sJ, sSL, sLB, sOB, sCNT = 28, 29, 30, 31, 32
vL16 = 1
vW = 2
vE = 5
vRD = 10
vOR = 11
vT = 12
ACC = 24
WF = 64
OF = 104

def gen():
    a = Asm()
    t = vT
    a(f".globl {NAME}\n.p2align 8\n.type {NAME},@function")
    a.label(NAME)
    a("s_cmp_ge_u32 s2, 256")
    a("s_cbranch_scc1 K3_END")
    stamp(a, 0)
    a("s_load_dwordx2 s[40:41], s[0:1], 16")
    a("s_load_dwordx2 s[42:43], s[0:1], 40")
    a("s_load_dwordx2 s[44:45], s[0:1], 48")
    a("s_load_dwordx2 s[46:47], s[0:1], 64")
    a(f"""v_lshrrev_b32 v1, 6, v0
    s_and_b32 s{sT0}, s2, 7
    v_and_b32 v0, 63, v0
    v_readfirstlane_b32 s{sWV}, v1
    s_lshr_b32 s{sT1}, s2, 3
    s_lshr_b32 s{sBR}, s{sT0}, 2
    s_and_b32 s{sT0}, s{sT0}, 3
    s_lshl_b32 s{sT0}, s{sT0}, 2
    s_and_b32 s{sT2}, s{sT1}, 3
    s_add_u32 s{sTB}, s{sT0}, s{sT2}
    s_lshr_b32 s{sCB}, s{sT1}, 2
    v_lshlrev_b32 v{vL16}, 4, v0
    s_cmp_ge_u32 s{sWV}, 4
    s_cbranch_scc0 K3_COMPUTE""")
    a(f"s_sub_u32 s{sWV}, s{sWV}, 4")
    if ROT:
        a(f"""s_lshl_b32 s{sT2}, s{sT2}, 1
        s_add_u32 s{sJ}, s{sCB}, s{sT2}
        s_cmp_ge_u32 s{sJ}, 9
        s_cselect_b32 s{sT0}, 9, 0
        s_sub_u32 s{sJ}, s{sJ}, s{sT0}""")
    else:
        a(f"s_mov_b32 s{sJ}, 0")
    for m in range(3):
        if m < 2:
            a(f"s_lshl_b32 s{sT0}, s{sWV}, 6")
            if m: a(f"s_add_u32 s{sT0}, s{sT0}, 256")
        else:
            a(f"s_lshl_b32 s{sT0}, s{sWV}, 5")
            a(f"s_add_u32 s{sT0}, s{sT0}, 512")
        a(f"""v_add_u32 v{t}, s{sT0}, v0
        v_mul_u32_u24 v{t+1}, 6554, v{t}
        v_lshrrev_b32 v{t+1}, 16, v{t+1}
        v_mul_u32_u24 v{t+2}, 10, v{t+1}
        v_sub_u32 v{t+2}, v{t}, v{t+2}
        v_min_u32 v{t+2}, 8, v{t+2}
        v_lshlrev_b32 v{t+2}, 4, v{t+2}
        v_bfe_u32 v{t+3}, v{t+1}, 4, 1
        v_bfe_u32 v{t+4}, v{t+1}, 2, 2
        v_and_b32 v{t+5}, 3, v{t+1}
        v_bfe_u32 v{t+6}, v{t+1}, 5, 1
        v_lshrrev_b32 v{t+7}, 1, v{t+4}
        v_mul_u32_u24 v{t+7}, 18, v{t+7}
        v_lshl_add_u32 v{t+7}, v{t+3}, 3, v{t+7}
        v_and_b32 v{t+8}, 1, v{t+4}
        v_lshl_add_u32 v{t+7}, v{t+8}, 2, v{t+7}
        v_add_u32 v{t+7}, v{t+7}, v{t+5}
        v_mul_u32_u24 v{t+8}, 36, v{t+6}
        v_add_u32 v{t+7}, v{t+7}, v{t+8}
        v_mul_u32_u24 v{t+7}, 1152, v{t+7}
        v_add_u32 v{vW+m}, v{t+7}, v{t+2}
        v_mul_u32_u24 v{t+7}, 288, v{t+6}
        v_mul_u32_u24 v{t+8}, 72, v{t+4}
        v_mul_u32_u24 v{t+3}, 36, v{t+3}
        v_add3_u32 v{t+7}, v{t+7}, v{t+8}, v{t+3}
        v_lshrrev_b32 v{t+8}, 1, v{t+5}
        v_mul_u32_u24 v{t+8}, 18, v{t+8}
        v_and_b32 v{t+5}, 1, v{t+5}
        v_add3_u32 v{t+7}, v{t+7}, v{t+8}, v{t+5}
        v_add_u32 v{t+7}, 16, v{t+7}
        v_mul_u32_u24 v{t+7}, 1152, v{t+7}
        v_add_u32 v{vE+m}, v{t+7}, v{t+2}""")
    a("s_waitcnt lgkmcnt(0)")
    a(f"""s_cmp_eq_u32 s{sBR}, 0
    s_cselect_b32 s4, s40, s42
    s_cselect_b32 s5, s41, s43
    s_mov_b32 s{sT3}, {WS_OA}
    s_cselect_b32 s{sT3}, s{sT3}, {WS_OB}""")
    srd(a, sO, 46, WS_BYTES); srd(a, sW, 4, WO_BYTES)
    a(f"""s_lshl_b32 s{sT0}, s{sTB}, 3
    s_lshl_b32 s{sT1}, s{sWV}, 1
    s_add_u32 s{sT0}, s{sT0}, s{sT1}
    s_mul_i32 s{sT0}, s{sT0}, {OT}
    s_add_u32 s{sOB}, s{sT0}, s{sT3}
    s_mul_i32 s33, s{sCB}, 144
    s_lshl_b32 s34, s{sWV}, 12
    s_lshl_b32 s35, s{sWV}, 10
    s_add_u32 s35, s35, {OSL}
    s_lshl_b32 s36, s{sWV}, 9
    s_add_u32 s36, s36, {OSL + 8192}
    s_mov_b32 s{sSL}, 0
    s_mov_b32 s{sLB}, 0""")
    uid = [0]
    def issue():
        uid[0] += 1
        u = uid[0]
        a(f"""s_lshl_b32 s{sT0}, s{sJ}, 11
        s_add_u32 s{sT0}, s{sT0}, s{sOB}
        s_add_u32 s{sT1}, s{sLB}, s34
        s_mov_b32 m0, s{sT1}
        s_add_u32 s{sT2}, s{sT0}, {OT}""")
        a.vm(f"buffer_load_dwordx4 v{vL16}, s[{sO}:{sO+3}], s{sT0} offen lds")
        a.vm(f"buffer_load_dwordx4 v{vL16}, s[{sO}:{sO+3}], s{sT0} offen offset:1024 lds")
        a(f"s_add_u32 m0, s{sT1}, 2048")
        a(f"s_cmp_eq_u32 s{sJ}, 8")
        a.vm(f"buffer_load_dwordx4 v{vL16}, s[{sO}:{sO+3}], s{sT2} offen lds")
        a.vm(f"buffer_load_dwordx4 v{vL16}, s[{sO}:{sO+3}], s{sT2} offen offset:1024 lds")
        a(f"s_cbranch_scc1 K3_XW{u}")
        a(f"""s_mul_i32 s{sT0}, s{sJ}, {72*1152}
        s_add_u32 s{sT0}, s{sT0}, s33
        s_add_u32 m0, s{sLB}, s35
        s_add_u32 s{sT1}, s{sLB}, s35""")
        a.vm(f"buffer_load_dwordx4 v{vW}, s[{sW}:{sW+3}], s{sT0} offen lds")
        a(f"s_add_u32 m0, s{sT1}, 4096")
        a("s_nop 0")
        a.vm(f"buffer_load_dwordx4 v{vW+1}, s[{sW}:{sW+3}], s{sT0} offen lds")
        a(f"s_add_u32 m0, s{sLB}, s36")
        a("s_mov_b32 exec_hi, 0")
        a.vm(f"buffer_load_dwordx4 v{vW+2}, s[{sW}:{sW+3}], s{sT0} offen lds")
        a(f"s_branch K3_XD{u}")
        a.label(f"K3_XW{u}")
        a(f"s_add_u32 m0, s{sLB}, s35")
        a(f"s_add_u32 s{sT1}, s{sLB}, s35")
        a(f"buffer_load_dwordx4 v{vE}, s[{sW}:{sW+3}], s33 offen lds")
        a(f"s_add_u32 m0, s{sT1}, 4096")
        a("s_nop 0")
        a(f"buffer_load_dwordx4 v{vE+1}, s[{sW}:{sW+3}], s33 offen lds")
        a(f"s_add_u32 m0, s{sLB}, s36")
        a("s_mov_b32 exec_hi, 0")
        a(f"buffer_load_dwordx4 v{vE+2}, s[{sW}:{sW+3}], s33 offen lds")
        a.label(f"K3_XD{u}")
        a(f"""s_mov_b32 exec_hi, -1
        s_add_u32 s{sJ}, s{sJ}, 1
        s_cmp_eq_u32 s{sJ}, 9
        s_cselect_b32 s{sJ}, 0, s{sJ}
        s_add_u32 s{sSL}, s{sSL}, 1
        s_add_u32 s{sLB}, s{sLB}, {SLOT}
        s_cmp_eq_u32 s{sSL}, {NSL}
        s_cselect_b32 s{sSL}, 0, s{sSL}
        s_cselect_b32 s{sLB}, 0, s{sLB}""")
    issue(); issue()
    a(f"s_mov_b32 s{sCNT}, 0")
    a.label("K3_LLOOP")
    a("s_waitcnt vmcnt(7)")
    a("s_barrier")
    issue()
    a(f"s_add_u32 s{sCNT}, s{sCNT}, 1")
    a(f"s_cmp_lt_u32 s{sCNT}, 7")
    a("s_cbranch_scc1 K3_LLOOP")
    a("s_waitcnt vmcnt(7)")
    a("s_barrier")
    a("s_waitcnt vmcnt(0)")
    a("s_barrier")
    a("s_endpgm")
    a.label("K3_COMPUTE")
    a(f"""v_lshrrev_b32 v{t}, 2, v0
    v_mul_u32_u24 v{t}, {WROW}, v{t}
    v_and_b32 v{t+1}, 3, v0
    v_lshl_add_u32 v{vRD}, v{t+1}, 3, v{t}
    v_add_u32 v{vRD}, {OSL}, v{vRD}
    s_lshl_b32 s{sT0}, s{sWV}, 12
    v_add_u32 v{vOR}, s{sT0}, v{vL16}""")
    for r in range(ACC, ACC + 40): a(f"v_mov_b32 v{r}, 0")
    a(f"s_mov_b32 s{sSL}, 0")
    a(f"s_mov_b32 s{sCNT}, 0")
    a(f"s_mov_b32 s50, {-(NSL-1)*SLOT & 0xffffffff}")
    a(f"s_mov_b32 s51, {SLOT}")
    a("s_waitcnt lgkmcnt(0)")
    srd(a, sOUT, 44, OUT_BYTES)
    srd(a, sO, 46, WS_BYTES)
    def rdo(sp, buf):
        for tt in range(2):
            r = OF + 8 * buf + 4 * tt
            a.ds(f"ds_read_b128 v[{r}:{r+3}], v{vOR} offset:{tt*2048 + sp*1024}", f"o{buf}")
    def rdw(sp, buf, ct):
        for u in range(2):
            r = WF + 20 * buf + 4 * ct + 2 * u
            a.ds(f"ds_read_b64_tr_b16 v[{r}:{r+1}], v{vRD} offset:{sp*32*WROW + u*16*WROW + ct*32}", f"w{buf}_{ct}")
    a("s_barrier")
    stamp(a, 1)
    rdo(0, 0)
    for ct in range(5): rdw(0, 0, ct)
    entry_q = list(a.lds_q)
    a(".p2align 6")
    a.label("K3_LOOP")
    for sp in range(2):
        buf = sp
        for ct in range(5):
            tags = [f"w{buf}_{ct}"]
            if ct == 0: tags.append(f"o{buf}")
            a.wait_ds(*tags)
            for tt in range(2):
                d = ACC + 4 * (5 * tt + ct)
                w = WF + 20 * buf + 4 * ct
                o = OF + 8 * buf + 4 * tt
                a(f"v_mfma_f32_16x16x32_bf16 v[{d}:{d+3}], v[{w}:{w+3}], v[{o}:{o+3}], v[{d}:{d+3}]")
            if sp == 0:
                if ct == 0: rdo(1, 1)
                rdw(1, 1, ct)
            else:
                if ct == 0:
                    a(f"""s_add_u32 s{sSL}, s{sSL}, 1
                    s_cmp_eq_u32 s{sSL}, {NSL}
                    s_cselect_b32 s{sT0}, s50, s51
                    s_cselect_b32 s{sSL}, 0, s{sSL}
                    v_add_u32 v{vRD}, s{sT0}, v{vRD}
                    v_add_u32 v{vOR}, s{sT0}, v{vOR}
                    s_cmp_eq_u32 s{sCNT}, 8
                    s_cbranch_scc1 K3_NOBAR
                    s_barrier""")
                    a.label("K3_NOBAR")
                    rdo(0, 0)
                rdw(0, 0, ct)
    a(f"s_add_u32 s{sCNT}, s{sCNT}, 1")
    a(f"s_cmp_lt_u32 s{sCNT}, 9")
    a("s_cbranch_scc1 K3_LOOP")
    assert a.lds_q == entry_q, (a.lds_q, entry_q)
    a.wait_ds_all()
    stamp(a, 2)
    a(f"""s_mul_i32 s{sT0}, s{sWV}, {32*SP}
    s_add_u32 s{sT0}, s{sT0}, {STG}
    v_and_b32 v{t}, 15, v0
    v_mul_u32_u24 v{t}, {SP}, v{t}
    v_lshrrev_b32 v{t+1}, 4, v0
    v_lshlrev_b32 v{t+1}, 3, v{t+1}
    v_add3_u32 v{t}, v{t}, v{t+1}, s{sT0}
    s_nop 4""")
    for tt in range(2):
        for ct in range(5):
            d = ACC + 4 * (5 * tt + ct)
            p = WF + 2 * (5 * tt + ct)
            a(f"v_cvt_pk_bf16_f32 v{p}, v{d}, v{d+1}")
            a(f"v_cvt_pk_bf16_f32 v{p+1}, v{d+2}, v{d+3}")
            a.ds(f"ds_write_b64 v{t}, v[{p}:{p+1}] offset:{tt*16*SP + ct*32}", "sw")
    a(f"""s_lshl_b32 s{sT1}, s{sTB}, 7
    s_lshl_b32 s{sT2}, s{sWV}, 5
    s_add_u32 s{sT1}, s{sT1}, s{sT2}
    s_mul_i32 s{sT1}, s{sT1}, 2304
    s_mul_i32 s{sT2}, s{sBR}, 1152
    s_add_u32 s{sT1}, s{sT1}, s{sT2}
    s_mul_i32 s{sT2}, s{sCB}, 144
    s_add_u32 s{sT1}, s{sT1}, s{sT2}""")
    stamp(a, 3)
    RD = 96
    for n in range(5):
        g = t + 2
        a(f"""v_add_u32 v{g}, {64*n}, v0
        v_mul_u32_u24 v{g+1}, 7282, v{g}
        v_lshrrev_b32 v{g+1}, 16, v{g+1}
        v_mul_u32_u24 v{g+2}, 9, v{g+1}
        v_sub_u32 v{g+2}, v{g}, v{g+2}
        v_lshlrev_b32 v{g+2}, 4, v{g+2}
        v_mul_u32_u24 v{g+3}, {SP}, v{g+1}
        v_add3_u32 v{g+3}, v{g+3}, v{g+2}, s{sT0}
        v_mul_u32_u24 v{g+1}, 2304, v{g+1}
        v_add_u32 v{RD+20+n}, v{g+1}, v{g+2}""")
        if n == 4:
            a(f"v_bfe_u32 v{g}, v0, 5, 1")
            a(f"v_lshlrev_b32 v{g}, 31, v{g}")
            a(f"v_or_b32 v{RD+20+n}, v{RD+20+n}, v{g}")
        a.ds(f"ds_read_b128 v[{RD+4*n}:{RD+4*n+3}], v{g+3}", f"r{n}")
    for n in range(5):
        a.wait_ds(f"r{n}")
        a(f"buffer_store_dwordx4 v[{RD+4*n}:{RD+4*n+3}], v{RD+20+n}, s[{sOUT}:{sOUT+3}], s{sT1} offen")
    stamp(a, 4)
    stamp_store(a, 2, sO, sWV, 5)
    a.label("K3_END")
    a("s_endpgm")
    return a.text(), descriptor(NAME, 128), LDS_BYTES
```

```python
import sys, os, asmlib
asmlib.PROF = bool(os.environ.get('PROF'))
import k1, k2, k3
from layout import *
HEADER = open("concat_heads__mha_block__linear_attn_block__prompt.s.ref").read().split("; Override launch geometry")[0]
def build():
    parts = [k1.gen(), k2.gen(), k3.gen()]
    names = [k1.NAME, k2.NAME, k3.NAME]
    blocks = [512, 512, 512]
    s = HEADER
    s += "; Three launches: QKV projections (both branches) -> attention + linear-attention finish -> output projections.\n"
    s += "; Generated by a hand-written Python generator (register maps and schedules are in its comments).\n"
    for n, p, b in zip(names, parts, blocks):
        s += f"; @launch kernel={n} grid=(256,1,1) block=({b},1,1) lds={p[2]}\n"
    s += '.amdgcn_target "amdgcn-amd-amdhsa--gfx950"\n.text\n'
    for p in parts: s += p[0]
    s += '.section .rodata,"a"\n'
    for p in parts: s += ".p2align 6\n" + p[1]
    return s
if __name__ == "__main__":
    out = sys.argv[1] if len(sys.argv) > 1 else "concat_heads__mha_block__linear_attn_block__prompt.s"
    open(out, "w").write(build())
    print("wrote", out)
```

```python
import sys, numpy as np
from hiprun import *
def kernel(name, nst, stmod, ldmod):
    st = "".join(f"  buffer_store_dwordx4 v[8:11], v1, s[12:15], s24 offen {stmod}\n  s_add_u32 s24, s24, 8192\n" for i in range(nst))
    ld = "".join(f"  s_mov_b32 m0, s28\n  s_add_u32 s28, s28, 8192\n  buffer_load_dwordx4 v1, s[12:15], s29 offen {ldmod} lds\n  s_add_u32 s29, s29, 8192\n" for i in range(5))
    return f"""
.globl {name}
.p2align 8
.type {name},@function
{name}:
  s_load_dwordx2 s[4:5], s[0:1], 0     ; out
  s_load_dwordx2 s[6:7], s[0:1], 8     ; data
  s_load_dwordx2 s[40:41], s[0:1], 16  ; dbg (zeroed)
  v_lshrrev_b32 v1, 6, v0
  s_nop 0
  v_readfirstlane_b32 s21, v1
  v_and_b32 v2, 63, v0
  v_lshlrev_b32 v1, 4, v2
  s_waitcnt lgkmcnt(0)
  s_mov_b32 s12, s6
  s_mov_b32 s13, s7
  s_mov_b32 s14, 0x10000000
  s_mov_b32 s15, 0x20000
  s_mov_b32 s44, s40
  s_mov_b32 s45, s41
  s_mov_b32 s46, 0x100
  s_mov_b32 s47, 0x20000
  ; flags at data + 0x8000000 : group (wg>>4... ) flag index = wg ; line per 16 flags
  ; clear own flag
  s_lshr_b32 s30, s2, 4
  s_lshl_b32 s30, s30, 7
  s_and_b32 s31, s2, 15
  s_lshl_b32 s31, s31, 2
  s_add_u32 s30, s30, s31
  s_add_u32 s30, s30, 0x8000000      ; own flag offset
  v_mov_b32 v3, 0
  v_mov_b32 v4, 1
  s_cmp_eq_u32 s21, 0
  s_cbranch_scc0 L_nc_{name}
  s_mov_b64 exec, 1
  buffer_store_dword v3, v3, s[12:15], s30 offen sc1
  s_waitcnt vmcnt(0)
  s_and_b32 s31, s2, 3
  s_lshl_b32 s31, s31, 6
  buffer_atomic_add v4, v3, s[44:47], s31 offen sc1
  s_mov_b64 exec, -1
L_nc_{name}:
  ; some delay work (sleep ~ 4us)
  s_mov_b32 s20, 40
L_d_{name}:
  s_sleep 4
  s_sub_u32 s20, s20, 1
  s_cmp_lg_u32 s20, 0
  s_cbranch_scc1 L_d_{name}
  s_barrier
  s_memrealtime s[8:9]
  s_waitcnt lgkmcnt(0)
  ; stores: region wg*64KB + wave*1KB
  s_lshl_b32 s24, s2, 16
  s_lshl_b32 s25, s21, 10
  s_add_u32 s24, s24, s25
  v_mov_b32 v8, s2
  v_mov_b32 v9, s2
  v_mov_b32 v10, s2
  v_mov_b32 v11, s2
{st}
  s_memrealtime s[32:33]
  s_waitcnt vmcnt(0)
  s_memrealtime s[34:35]
  s_barrier
  s_cmp_eq_u32 s21, 0
  s_cbranch_scc0 L_nf_{name}
  s_mov_b64 exec, 1
  buffer_store_dword v4, v3, s[12:15], s30 offen sc1
  s_mov_b64 exec, -1
L_nf_{name}:
  s_lshr_b32 s31, s2, 4
  s_add_u32 s31, s31, 3
  s_and_b32 s31, s31, 15
  s_mov_b32 s20, 100000
  s_cmp_eq_u32 s21, 0
  s_cbranch_scc0 L_skip_{name}
  v_lshlrev_b32 v5, 6, v2
  v_cmp_gt_u32 vcc, 4, v2
  s_mov_b32 s20, 100000
L_pc_{name}:
  v_mov_b32 v6, 64
  s_and_saveexec_b64 s[16:17], vcc
  buffer_load_dword v6, v5, s[44:47], 0 offen sc1
  s_mov_b64 exec, s[16:17]
  s_waitcnt vmcnt(0)
  v_cmp_ne_u32 s[18:19], 64, v6
  s_nop 3
  s_cmp_eq_u64 s[18:19], 0
  s_cbranch_scc1 L_pcd_{name}
  s_sub_u32 s20, s20, 1
  s_cmp_lg_u32 s20, 0
  s_cbranch_scc1 L_pc_{name}
L_pcd_{name}:
  s_lshr_b32 s31, s2, 4
  s_add_u32 s31, s31, 3
  s_and_b32 s31, s31, 15
  s_lshl_b32 s36, s31, 7
  s_add_u32 s36, s36, 0x8000000
  v_lshlrev_b32 v5, 2, v2
  v_cmp_gt_u32 vcc, 16, v2
  s_mov_b32 s20, 100000
L_pf_{name}:
  v_mov_b32 v6, 1
  s_and_saveexec_b64 s[16:17], vcc
  buffer_load_dword v6, v5, s[12:15], s36 offen sc1
  s_mov_b64 exec, s[16:17]
  s_waitcnt vmcnt(0)
  v_cmp_ne_u32 s[18:19], 1, v6
  s_nop 3
  s_cmp_eq_u64 s[18:19], 0
  s_cbranch_scc1 L_pfd_{name}
  s_sleep 1
  s_sub_u32 s20, s20, 1
  s_cmp_lg_u32 s20, 0
  s_cbranch_scc1 L_pf_{name}
L_pfd_{name}:
L_skip_{name}:
  s_barrier
  s_memrealtime s[36:37]
  ; load 40 KB from producer region (wg' = group*16 + (wg&15))
  s_lshl_b32 s29, s31, 4
  s_and_b32 s38, s2, 15
  s_add_u32 s29, s29, s38
  s_lshl_b32 s29, s29, 16
  s_add_u32 s29, s29, s25
  s_mov_b32 s28, s25
{ld}
  s_waitcnt vmcnt(0)
  s_barrier
  s_memrealtime s[10:11]
  ds_read_b32 v7, v1
  s_waitcnt lgkmcnt(0)
  ; record
  s_lshl_b32 s22, s2, 3
  s_add_u32 s22, s22, s21
  s_lshl_b32 s22, s22, 5
  v_mov_b32 v12, s8
  v_mov_b32 v13, s32
  v_mov_b32 v14, s34
  v_mov_b32 v15, s36
  v_mov_b32 v16, s10
  v_mov_b32 v17, v7
  v_mov_b32 v18, s20
  v_mov_b32 v19, 0
  v_mov_b32 v4, s22
  s_mov_b32 s12, s4
  s_mov_b32 s13, s5
  s_mov_b32 s14, 0x100000
  s_mov_b64 exec, 1
  buffer_store_dwordx4 v[12:15], v4, s[12:15], 0 offen
  buffer_store_dwordx4 v[16:19], v4, s[12:15], 0 offen offset:16
  s_endpgm
""" + kd(name, 32)
cfgs = [("h_sc1_5", 5, "sc1", "sc1"), ("h_sc1_5_plainld", 5, "sc1", ""), ("h_sc1_2", 2, "sc1", "sc1"), ("h_sc01_5", 5, "sc0 sc1", "sc0 sc1"), ("h_nt_5", 5, "sc1 nt", "sc1")]
src = '.amdgcn_target "amdgcn-amd-amdhsa--gfx950"\n.text\n'
for c in cfgs: src += kernel(*c)
co = build(src, [c[0] for c in cfgs], "mb12b")
if "--build" in sys.argv: sys.exit(0)
m = Mod(co)
out = Buf(0x100000); data = Buf(0x10000000); dbg = Buf(4096); flush = Buf(512 << 20)
for mode in ("warm", "flush"):
  for n, nst, a_, b_ in cfgs:
    vals = []
    for it in range(6):
        if mode == "flush": flush.memset(it); sync()
        data.memset(0xee if it & 1 else 0x11); dbg.memset(0); out.memset(0); sync()
        m.launch(n, (256,), (512,), [out.ptr, data.ptr, dbg.ptr] + [0] * 6, lds=131072); sync()
        o = out.to_np(np.uint32)[:256 * 8 * 8].reshape(256, 8, 8).astype(np.int64)
        t0 = o[:, :, 0].min()
        t = (o[:, :, :5] - t0) * 10
        exp = ((((np.arange(256) >> 4) + 3) & 15) * 16 + (np.arange(256) & 15))
        ok = (o[:, 0, 5] == exp).all()
        vals.append(list(np.median(t.reshape(-1, 5), axis=0)) + [t[:, :, 4].max(), ok, o[:, 0, 6].min(), t[:, :, 0].max(), t[:, :, 2].max(), t[:, :, 3].max()])
    v = vals[-1]
    print("%-6s %-16s [ns] start med %d max %d | issued %d | drained med %d max %d | polled med %d max %d | loaded med %d max %d ok=%s spins %d" % (mode, n, v[0], v[8], v[1], v[2], v[9], v[3], v[10], v[4], v[5], v[6], 100000 - v[7]))
```
